```python
import torch

def _softmax(x, axis=-1):
    return torch.softmax(x, dim=axis)
def _gelu(x):
    return torch.nn.functional.gelu(x, approximate="tanh")
def _silu(x):
    return torch.nn.functional.silu(x)
def _sigmoid(x):
    return torch.sigmoid(x)
def _layernorm(x, axis=-1, eps=1e-5):
    m = x.mean(dim=axis, keepdim=True)
    v = x.var(dim=axis, keepdim=True, unbiased=False)
    return (x - m) / torch.sqrt(v + eps)
def _scatter_add(tgt, idx, src, axis=0):
    return tgt.clone().index_add_(axis, idx, src)
def _segment_sum(src, seg, n):
    out = torch.zeros((n,) + src.shape[1:], dtype=src.dtype)
    return out.index_add_(0, seg, src)
def _pad(x, pw):
    flat = tuple(v for pair in reversed(pw) for v in pair)
    return torch.nn.functional.pad(x, flat)

kernel_name = 'recurrent_scan__linear_attn_block__geglu_ffn__prompt'

def setup_inputs():

    _w = (lambda a: (lambda t: t.to(torch.bfloat16) if t.is_floating_point() else t)(torch.as_tensor(a)))
    def _A_setup():
        B, S, D = 1, 2048, 512
        return {
            "x": _w((lambda *s: torch.randn(*s, dtype=torch.bfloat16) * 0.05)(B, S, D)),
            "wqkv": _w((lambda *s: torch.randn(*s, dtype=torch.bfloat16) * 0.05)(D, 3 * D)),
            "wo": _w((lambda *s: torch.randn(*s, dtype=torch.bfloat16) * 0.05)(D, D)),
        }
    _A_in = _A_setup()

    def _B_setup():
        B, S, D, F = 1, 2048, 512, 1792
        return {
            "x": _w((lambda *s: torch.randn(*s, dtype=torch.bfloat16) * 0.05)(B, S, D)),
            "w_gate": _w((lambda *s: torch.randn(*s, dtype=torch.bfloat16) * 0.05)(D, F)),
            "w_up": _w((lambda *s: torch.randn(*s, dtype=torch.bfloat16) * 0.05)(D, F)),
            "w_down": _w((lambda *s: torch.randn(*s, dtype=torch.bfloat16) * 0.05)(F, D)),
        }
    _B_in = _B_setup()

    return {
        "A_x": _A_in["x"],
        "A_wqkv": _A_in["wqkv"],
        "A_wo": _A_in["wo"],
        "B_x": _B_in["x"],
        "B_w_gate": _B_in["w_gate"],
        "B_w_up": _B_in["w_up"],
        "B_w_down": _B_in["w_down"],
    }

def reference(A_x, A_wqkv, A_wo, B_x, B_w_gate, B_w_up, B_w_down):
    def _A_ref(x, wqkv, wo):
        B, S, D = x.shape
        H = 32; Dh = D // H
        qkv = (lambda x, *d: x.permute(*d))((x @ wqkv).reshape(B, S, 3, H, Dh), 2, 0, 3, 1, 4)
        q, k, v = qkv[0], qkv[1], qkv[2]
        phi = lambda t: torch.where(t > 0, t + 1, torch.exp(t)) + 1e-6
        pq, pk = phi(q), phi(k)
        kv = torch.einsum("bhsd,bhse->bhde", pk, v)
        z = torch.einsum("bhsd->bhd", pk)
        num = torch.einsum("bhqd,bhde->bhqe", pq, kv)
        den = torch.einsum("bhqd,bhd->bhq", pq, z)[..., None] + 1e-6
        o = num / den
        return (lambda x, *d: x.permute(*d))(o, 0, 2, 1, 3).reshape(B, S, D) @ wo

    def _B_ref(x, w_gate, w_up, w_down):
        return (_gelu(x @ w_gate) * (x @ w_up)) @ w_down

    x = A_x
    xn = _layernorm(x, axis=-1)
    s = _A_ref(xn, A_wqkv, A_wo)
    g = _silu(_B_ref(xn, B_w_gate, B_w_up, B_w_down))
    return x + s * g
```

```python
import re

REG_RE = re.compile(r'^(v|s|a)(\d+)$')
RNG_RE = re.compile(r'^(v|s|a)\[(\d+):(\d+)\]$')


def regs_of(tok):
    tok = tok.strip()
    neg = False
    if tok.startswith('-'):
        tok = tok[1:]
    m = re.match(r'^abs\((.*)\)$', tok)
    if m:
        tok = m.group(1)
    m = REG_RE.match(tok)
    if m:
        return {tok}
    m = RNG_RE.match(tok)
    if m:
        k, lo, hi = m.group(1), int(m.group(2)), int(m.group(3))
        return {f'{k}{i}' for i in range(lo, hi + 1)}
    if tok in ('vcc', 'exec', 'm0', 'scc'):
        return {tok}
    if tok in ('vcc_lo', 'vcc_hi'):
        return {'vcc'}
    if tok in ('exec_lo', 'exec_hi'):
        return {'exec'}
    return set()


def split_ops(s):
    out, depth, cur = [], 0, ''
    for ch in s:
        if ch == '[' or ch == '(':
            depth += 1
        elif ch == ']' or ch == ')':
            depth -= 1
        if ch == ',' and depth == 0:
            out.append(cur.strip())
            cur = ''
        else:
            cur += ch
    if cur.strip():
        out.append(cur.strip())
    return out


TRANS = ('v_exp_f32', 'v_log_f32', 'v_rcp_f32', 'v_rsq_f32', 'v_sqrt_f32', 'v_sin_f32', 'v_cos_f32')


class Ins:
    __slots__ = ('text', 'op', 'rd', 'wr', 'cls', 'states', 'srcc', 'label', 'storedata', 'dpp')

    def __init__(self, text):
        self.text = text
        self.label = None
        self.srcc = set()
        self.storedata = set()
        self.dpp = False
        body = text.split(';')[0].strip()
        if body.endswith(':'):
            self.label = body[:-1]
            self.op = None
            self.rd = set(); self.wr = set(); self.cls = 'label'; self.states = 0
            return
        parts = body.split(None, 1)
        op = parts[0]
        self.op = op
        rest = parts[1] if len(parts) > 1 else ''
        ops_txt = rest
        mods = []
        m = re.match(r'^(.*?)(\s+(?:offen|idxen|off|lds|glc|sc0|sc1|nt|offset\d?:\S+|row_\S+|quad_perm:\S+|bank_mask:\S+|bound_ctrl:\S+|op_sel\S*|neg_lo\S*|neg_hi\S*|clamp|cbsz:\S+|abid:\S+|blgp:\S+|vmcnt\(\d+\)|lgkmcnt\(\d+\)|expcnt\(\d+\))(?:\s+.*)?)?$', rest)
        if m and m.group(2):
            ops_txt = m.group(1)
            mods = m.group(2).split()
        if op == 's_waitcnt':
            ops_txt = ''
        operands = split_ops(ops_txt)
        self.states = 1
        rd, wr = set(), set()
        cls = 'other'
        if op == 's_nop':
            self.states = int(operands[0], 0) + 1
            cls = 'salu'
        elif op.startswith('v_mfma'):
            cls = 'mfma'
            wr |= regs_of(operands[0])
            rd |= regs_of(operands[1]) | regs_of(operands[2]) | regs_of(operands[3])
            self.srcc = regs_of(operands[3])
        elif op.startswith('v_cmp'):
            cls = 'valu'
            wr |= regs_of(operands[0])
            for o in operands[1:]:
                rd |= regs_of(o)
            if op.startswith('v_cmpx'):
                wr.add('exec')
        elif op in ('v_readfirstlane_b32', 'v_readlane_b32'):
            cls = 'valu'
            wr |= regs_of(operands[0])
            for o in operands[1:]:
                rd |= regs_of(o)
        elif op in ('v_permlane32_swap_b32', 'v_permlane16_swap_b32'):
            cls = 'valu'
            for o in operands:
                rd |= regs_of(o); wr |= regs_of(o)
        elif op in ('v_add_co_u32', 'v_addc_co_u32', 'v_sub_co_u32'):
            cls = 'valu'
            wr |= regs_of(operands[0]) | regs_of(operands[1])
            for o in operands[2:]:
                rd |= regs_of(o)
        elif op.startswith('v_'):
            cls = 'trans' if op.split('_e')[0] in TRANS or op in TRANS else 'valu'
            wr |= regs_of(operands[0])
            for o in operands[1:]:
                rd |= regs_of(o)
            if op.startswith('v_fmac') or op.startswith('v_dot2c') or op.startswith('v_pk_fmac'):
                rd |= regs_of(operands[0])
            if op == 'v_cndmask_b32' and len(operands) == 3:
                rd.add('vcc')
            if op.endswith('_dpp') or any(x.startswith(('row_', 'quad_perm')) for x in mods):
                self.dpp = True
        elif op.startswith('s_load') or op.startswith('s_buffer_load'):
            cls = 'smem'
            wr |= regs_of(operands[0])
            for o in operands[1:]:
                rd |= regs_of(o)
        elif op.startswith('s_cbranch') or op == 's_branch':
            cls = 'branch'
        elif op in ('s_waitcnt', 's_barrier', 's_endpgm', 's_setprio', 's_sleep'):
            cls = 'salu'
        elif op.startswith('s_cmp'):
            cls = 'salu'
            for o in operands:
                rd |= regs_of(o)
            wr.add('scc')
        elif op.startswith('s_'):
            cls = 'salu'
            if op in ('s_memtime', 's_memrealtime'):
                wr |= regs_of(operands[0])
            else:
                wr |= regs_of(operands[0])
                for o in operands[1:]:
                    rd |= regs_of(o)
                if 'saveexec' in op:
                    wr.add('exec'); rd.add('exec')
                wr.add('scc')
        elif op.startswith('buffer_') or op.startswith('global_'):
            cls = 'vmem'
            is_store = '_store' in op
            is_atomic = '_atomic' in op
            lds = 'lds' in mods or '_lds_' in op
            if is_store:
                for o in operands:
                    rd |= regs_of(o)
                if op.startswith('buffer_'):
                    self.storedata = regs_of(operands[0])
                else:
                    self.storedata = regs_of(operands[1])
                if not (op.endswith('x3') or op.endswith('x4')):
                    self.storedata = set()
            elif lds:
                for o in operands:
                    rd |= regs_of(o)
                rd.add('m0')
                cls = 'vmemlds'
            elif is_atomic:
                for o in operands:
                    rd |= regs_of(o)
                if 'sc0' in mods:
                    wr |= regs_of(operands[0])
            else:
                wr |= regs_of(operands[0])
                for o in operands[1:]:
                    rd |= regs_of(o)
        elif op.startswith('ds_'):
            cls = 'ds'
            if op.startswith('ds_read') or op.startswith('ds_bpermute') or op.startswith('ds_swizzle') or op.startswith('ds_permute'):
                wr |= regs_of(operands[0])
                for o in operands[1:]:
                    rd |= regs_of(o)
            else:
                for o in operands:
                    rd |= regs_of(o)
        else:
            raise ValueError('unknown instruction: ' + text)
        self.rd, self.wr, self.cls = rd, wr, cls


def is_sgpr(r):
    return r.startswith('s') and r[1:].isdigit() or r == 'vcc'


def need_states(p, c):
    n = 0
    pv = p.cls in ('valu', 'trans')
    cv = c.cls in ('valu', 'trans')
    if pv:
        wv = {r for r in p.wr if r[0] in 'va' and r not in ('vcc',)}
        ws = {r for r in p.wr if is_sgpr(r)}
        if c.op in ('v_readfirstlane_b32', 'v_readlane_b32') and (wv & c.rd):
            n = max(n, 1)
        if cv and (ws & c.rd):
            n = max(n, 2)
        if c.op in ('v_readlane_b32',) and (ws & c.rd):
            n = max(n, 4)
        if c.cls in ('vmem', 'vmemlds', 'ds') and (ws & c.rd):
            n = max(n, 5)
        if c.cls == 'mfma' and (wv & c.rd):
            n = max(n, 2)
        if c.dpp and (wv & c.rd):
            n = max(n, 2)
        if c.op in ('v_permlane32_swap_b32', 'v_permlane16_swap_b32') and (wv & c.rd):
            n = max(n, 2)
        if 'exec' in p.wr and (c.cls == 'mfma' or c.dpp):
            n = max(n, 5)
    if p.cls == 'trans' and (p.wr & c.rd) and c.cls in ('valu', 'mfma', 'vmem', 'ds', 'vmemlds'):
        n = max(n, 1)
    if p.cls == 'salu' and 'm0' in p.wr and (c.cls == 'vmemlds' or 'm0' in c.rd and c.cls != 'salu'):
        n = max(n, 1)
    if p.cls == 'mfma':
        if c.cls == 'mfma':
            ov_c = p.wr & c.srcc
            if ov_c and not (c.srcc == p.wr):
                n = max(n, 10)
            ab = (c.rd - c.srcc) | ((c.rd & c.srcc) - c.srcc)
            if p.wr & (c.rd - c.srcc):
                n = max(n, 12)
            if (p.wr & c.wr) and c.wr != p.wr:
                n = max(n, 12)
        else:
            if (p.wr & (c.rd | c.wr)):
                n = max(n, 12)
        if c.cls in ('valu', 'trans') and (p.srcc & c.wr):
            n = max(n, 7)
    if p.storedata and (p.storedata & c.wr) and c.cls != 'label':
        n = max(n, 2)
    return n


class Prog:
    def __init__(self):
        self.ins = []

    def __call__(self, text):
        for line in text.strip('\n').split('\n'):
            line = line.strip()
            if not line or line.startswith(';'):
                continue
            self.ins.append(Ins(line))

    def raw(self, text):
        i = Ins('L__raw:')
        i.text = text
        i.label = None
        i.cls = 'raw'
        i.states = 0
        self.ins.append(i)

    def hazard_pass(self, window=24):
        out = []
        nins = 0
        for c in self.ins:
            if c.cls in ('label', 'raw'):
                out.append(c)
                continue
            need = 0
            dist = 0
            for p in reversed(out):
                if p.cls in ('raw',):
                    continue
                if p.cls == 'label':
                    continue
                if dist >= window:
                    break
                n = need_states(p, c)
                if n > dist:
                    need = max(need, n - dist)
                dist += p.states
            while need > 0:
                k = min(need, 16)
                out.append(Ins(f's_nop {k-1}'))
                need -= k
                nins += 1
            out.append(c)
        self.ins = out
        return nins

    def text(self):
        lines = []
        for i in self.ins:
            if i.cls == 'label':
                lines.append(i.text)
            elif i.cls == 'raw':
                lines.append(i.text)
            else:
                lines.append('    ' + i.text)
        return '\n'.join(lines) + '\n'
```

```python
import sys
sys.path.insert(0, 'dev')
from asmdsl import Prog

NAME = 'recurrent_scan__linear_attn_block__geglu_ffn__prompt'

WS_XN = 0
WS_H = 2 * 1024 * 1024
WS_PQ = WS_H + 64 * 112 * 1024
WS_KVP = WS_PQ + 64 * 32 * 1024
WS_KVZ = WS_KVP + 64 * 32 * 2048
WS_SIZE = 268435456

KD = '''.amdhsa_kernel {name}
  .amdhsa_next_free_vgpr {vgpr}
  .amdhsa_next_free_sgpr {sgpr}
  .amdhsa_accum_offset {acc}
  .amdhsa_group_segment_fixed_size 0
  .amdhsa_kernarg_size 80
  .amdhsa_user_sgpr_count 2
  .amdhsa_user_sgpr_kernarg_segment_ptr 1
  .amdhsa_system_sgpr_workgroup_id_x 1
.end_amdhsa_kernel
'''


def f32bits(x):
    import struct
    return '0x%08x' % struct.unpack('<I', struct.pack('<f', x))[0]


def allreduce_sum(p, v, t, sbase):
    p(f'''
    v_add_f32_dpp {t}, {v}, {v} quad_perm:[1,0,3,2] row_mask:0xf bank_mask:0xf
    v_add_f32_dpp {v}, {t}, {t} quad_perm:[2,3,0,1] row_mask:0xf bank_mask:0xf
    v_add_f32_dpp {t}, {v}, {v} row_ror:4 row_mask:0xf bank_mask:0xf
    v_add_f32_dpp {v}, {t}, {t} row_ror:8 row_mask:0xf bank_mask:0xf
    v_readlane_b32 s{sbase}, {v}, 0
    v_readlane_b32 s{sbase+1}, {v}, 16
    v_readlane_b32 s{sbase+2}, {v}, 32
    v_readlane_b32 s{sbase+3}, {v}, 48
    v_mov_b32 {v}, s{sbase}
    v_add_f32 {v}, s{sbase+1}, {v}
    v_add_f32 {v}, s{sbase+2}, {v}
    v_add_f32 {v}, s{sbase+3}, {v}
    ''')


def rb(p, dst, src, tmp):
    p(f'''
    v_cvt_pk_bf16_f32 {tmp}, {src}, {src}
    v_lshlrev_b32 {dst}, 16, {tmp}
    ''')


def gen_ln():
    p = Prog()
    p.raw('ln_kernel:')
    p(f'''
    s_cmp_ge_u32 s2, 512
    s_cbranch_scc1 L_ln_end
    s_load_dwordx2 s[4:5], s[0:1], 0
    s_load_dwordx2 s[6:7], s[0:1], 72
    v_and_b32 v1, 63, v0
    v_lshrrev_b32 v2, 6, v0
    s_lshl_b32 s3, s2, 2
    v_add_u32 v2, s3, v2
    v_lshlrev_b32 v3, 10, v2
    v_lshlrev_b32 v4, 4, v1
    v_add_u32 v3, v3, v4
    s_waitcnt lgkmcnt(0)
    s_mov_b32 s8, s4
    s_mov_b32 s9, s5
    s_mov_b32 s10, 2097152
    s_mov_b32 s11, 0x00020000
    s_mov_b32 s12, s6
    s_mov_b32 s13, s7
    s_mov_b32 s14, {WS_SIZE}
    s_mov_b32 s15, 0x00020000
    buffer_load_dwordx4 v[8:11], v3, s[8:11], 0 offen
    v_lshrrev_b32 v5, 5, v2
    v_lshlrev_b32 v5, 5, v5
    v_lshrrev_b32 v6, 1, v1
    v_add_u32 v5, v5, v6
    v_lshlrev_b32 v5, 10, v5
    v_and_b32 v6, 1, v1
    v_lshlrev_b32 v6, 5, v6
    v_and_b32 v7, 31, v2
    v_add_u32 v6, v6, v7
    v_lshlrev_b32 v6, 4, v6
    v_add_u32 v5, v5, v6
    s_waitcnt vmcnt(0)
    ''')
    for j in range(4):
        p(f'''
        v_lshlrev_b32 v{16+2*j}, 16, v{8+j}
        v_and_b32 v{17+2*j}, 0xffff0000, v{8+j}
        ''')
    p('''
    v_add_f32 v24, v16, v17
    v_add_f32 v25, v18, v19
    v_add_f32 v26, v20, v21
    v_add_f32 v27, v22, v23
    v_add_f32 v24, v24, v25
    v_add_f32 v26, v26, v27
    v_add_f32 v24, v24, v26
    ''')
    allreduce_sum(p, 'v24', 'v25', 16)
    p('v_mul_f32 v24, 0x3b000000, v24')
    p('v_mov_b32 v26, 0')
    for j in range(8):
        p(f'''
        v_sub_f32 v27, v{16+j}, v24
        v_fmac_f32 v26, v27, v27
        ''')
    allreduce_sum(p, 'v26', 'v25', 16)
    p('v_mul_f32 v26, 0x3b000000, v26')
    rb(p, 'v28', 'v24', 'v25')
    rb(p, 'v29', 'v26', 'v25')
    p(f'v_add_f32 v29, {f32bits(1e-5)}, v29')
    rb(p, 'v29', 'v29', 'v25')
    p('v_sqrt_f32 v29, v29')
    rb(p, 'v29', 'v29', 'v25')
    p('''
    v_rcp_f32 v30, v29
    v_fma_f32 v31, -v29, v30, 1.0
    v_fma_f32 v30, v31, v30, v30
    ''')
    for j in range(4):
        a, b = 16 + 2 * j, 17 + 2 * j
        p(f'''
        v_sub_f32 v{a}, v{a}, v28
        v_sub_f32 v{b}, v{b}, v28
        v_cvt_pk_bf16_f32 v32, v{a}, v{b}
        v_lshlrev_b32 v{a}, 16, v32
        v_and_b32 v{b}, 0xffff0000, v32
        v_mul_f32 v33, v{a}, v30
        v_mul_f32 v34, v{b}, v30
        v_fma_f32 v35, -v33, v29, v{a}
        v_fma_f32 v36, -v34, v29, v{b}
        v_fma_f32 v33, v35, v30, v33
        v_fma_f32 v34, v36, v30, v34
        v_cvt_pk_bf16_f32 v{12+j}, v33, v34
        ''')
    p(f'''
    buffer_store_dwordx4 v[12:15], v5, s[12:15], 0 offen
    ''')
    p.raw('L_ln_end:')
    p('s_endpgm')
    n = p.hazard_pass()
    return p.text(), KD.format(name='ln_kernel', vgpr=40, sgpr=24, acc=40)


SLOT = 16512
RREG = 8256
K1_LDS = 8 * SLOT
C1 = -2.0 * 1.4426950408889634 * 0.7978845608028654
C2 = C1 * 0.044715
LOG2E = 1.4426950408889634


def k1_unpack(p, x0, x1, src):
    p(f"""
    v_lshlrev_b32 {x0}, 16, {src}
    v_and_b32 {x1}, 0xffff0000, {src}
    """)


def gen_k1():
    p = Prog()
    p.raw('k1_kernel:')
    p(f"""
    s_cmp_ge_u32 s2, 256
    s_cbranch_scc1 L_k1_end
    s_load_dwordx2 s[4:5], s[0:1], 8
    s_load_dwordx2 s[6:7], s[0:1], 32
    s_load_dwordx2 s[8:9], s[0:1], 40
    s_load_dwordx2 s[10:11], s[0:1], 72
    v_lshrrev_b32 v1, 6, v0
    v_and_b32 v2, 63, v0
    s_and_b32 s12, s2, 7
    s_lshr_b32 s13, s2, 3
    s_lshl_b32 s14, s12, 2
    s_and_b32 s15, s13, 3
    s_add_u32 s14, s14, s15
    s_lshr_b32 s15, s13, 2
    v_readfirstlane_b32 s16, v1
    s_mov_b32 s40, {f32bits(C1)}
    s_mov_b32 s41, {f32bits(C1)}
    s_mov_b32 s42, {f32bits(C2)}
    s_mov_b32 s43, {f32bits(C2)}
    s_mov_b32 s44, 1.0
    s_mov_b32 s45, 1.0
    s_mov_b32 s46, {f32bits(LOG2E)}
    s_mov_b32 s47, {f32bits(LOG2E)}
    s_mov_b32 s48, {f32bits(1e-6)}
    s_mov_b32 s49, {f32bits(1e-6)}
    s_mov_b32 s50, 0xffff0000
    s_mov_b32 s51, 0xffff0000
    s_waitcnt lgkmcnt(0)
    """)
    p(f"""
    s_mov_b32 s20, s10
    s_mov_b32 s21, s11
    s_mov_b32 s22, {WS_SIZE}
    s_mov_b32 s23, 0x00020000
    s_mov_b32 s32, s4
    s_mov_b32 s33, s5
    s_mov_b32 s34, 1572864
    s_mov_b32 s35, 0x00020000
    s_and_b32 s17, s16, 1
    s_lshr_b32 s18, s16, 1
    s_cmp_ge_u32 s14, 28
    s_cbranch_scc1 L_k1_qsrc
    s_cmp_eq_u32 s17, 0
    s_cselect_b32 s24, s6, s8
    s_cselect_b32 s25, s7, s9
    s_lshl_b32 s19, s14, 7
    s_mov_b32 s28, 3584
    s_mov_b32 s29, 1835008
    s_branch L_k1_srcdone
    """)
    p.raw('L_k1_qsrc:')
    p(f"""
    s_mov_b32 s24, s4
    s_mov_b32 s25, s5
    s_sub_u32 s19, s14, 28
    s_lshl_b32 s19, s19, 8
    s_lshl_b32 s30, s17, 7
    s_add_u32 s19, s19, s30
    s_mov_b32 s28, 3072
    s_mov_b32 s29, 1572864
    """)
    p.raw('L_k1_srcdone:')
    p(f"""
    s_add_u32 s24, s24, s19
    s_addc_u32 s25, s25, 0
    s_sub_u32 s26, s29, s19
    s_mov_b32 s27, 0x00020000
    """)
    p(f"""
    v_lshrrev_b32 v3, 3, v2
    v_mul_lo_u32 v3, v3, s28
    v_bfe_u32 v4, v2, 1, 2
    v_bfe_u32 v5, v2, 4, 1
    v_xor_b32 v4, v4, v5
    v_lshlrev_b32 v4, 5, v4
    v_and_b32 v5, 1, v2
    v_lshlrev_b32 v5, 4, v5
    v_add3_u32 v3, v3, v4, v5
    """)
    p(f"""
    v_lshrrev_b32 v4, 2, v2
    v_mul_u32_u24 v4, 3072, v4
    v_bfe_u32 v5, v2, 1, 1
    v_lshlrev_b32 v5, 10, v5
    v_sub_u32 v5, 2048, v5
    v_add_u32 v4, v4, v5
    v_and_b32 v5, 1, v2
    v_lshlrev_b32 v5, 4, v5
    s_lshl_b32 s30, s14, 5
    v_add3_u32 v4, v4, v5, s30
    """)
    p(f"""
    v_bfe_u32 v5, v2, 4, 1
    v_mul_u32_u24 v5, {RREG}, v5
    v_lshrrev_b32 v6, 5, v2
    v_lshlrev_b32 v6, 3, v6
    v_bfe_u32 v7, v2, 2, 2
    v_add_u32 v6, v6, v7
    v_lshlrev_b32 v6, 7, v6
    v_add_u32 v5, v5, v6
    v_and_b32 v6, 3, v2
    v_lshlrev_b32 v6, 3, v6
    v_add_u32 v5, v5, v6
    v_bfe_u32 v7, v2, 3, 1
    """)
    for t in range(4):
        p(f"""
        v_xor_b32 v6, {t}, v7
        v_lshlrev_b32 v6, 5, v6
        v_add_u32 v{8+t}, v5, v6
        v_add_u32 v{12+t}, {4*SLOT}, v{8+t}
        """)
    p(f"""
    v_lshrrev_b32 v6, 5, v2
    v_lshlrev_b32 v6, 3, v6
    v_bfe_u32 v7, v2, 2, 2
    v_add_u32 v6, v6, v7
    v_lshlrev_b32 v6, 6, v6
    v_bfe_u32 v7, v2, 4, 1
    v_lshlrev_b32 v7, 5, v7
    v_add_u32 v6, v6, v7
    v_and_b32 v7, 3, v2
    v_lshlrev_b32 v7, 3, v7
    v_add_u32 v6, v6, v7
    v_lshlrev_b32 v7, 4, v2
    """)
    p(f"""
    s_lshl_b32 s31, s15, 3
    s_add_u32 s31, s31, s16
    s_lshl_b32 s36, s31, 15
    s_mul_i32 s37, s17, {RREG}
    s_lshl_b32 s30, s18, 11
    s_add_u32 s37, s37, s30
    s_lshl_b32 s30, s18, 4
    s_mul_i32 s38, s30, s28
    s_lshl_b32 s39, s28, 3
    """)
    for c in range(8):
        p(f"""
        s_add_u32 m0, s37, {c*SLOT}
        s_mul_i32 s30, s28, {64*c}
        s_add_u32 s30, s30, s38
        buffer_load_dwordx4 v3, s[24:27], s30 offen lds
        s_add_u32 m0, s37, {c*SLOT + 1024}
        s_add_u32 s30, s30, s39
        buffer_load_dwordx4 v3, s[24:27], s30 offen lds
        """)
        p(f"s_add_u32 s30, s36, {c*4096}")
        for j in range(4):
            p(f"buffer_load_dwordx4 a[{16*c+4*j}:{16*c+4*j+3}], v7, s[20:23], s30 offen offset:{1024*j}")

    F = [16, 20, 24, 28]
    ACC = [32, 48, 64, 80]

    def blk_reads(t, c, kk):
        base = f'v{8+t}' if c < 4 else f'v{12+t}'
        off = (c % 4) * SLOT + 2048 * kk
        p(f"""
        ds_read_b64_tr_b16 v[{F[t]}:{F[t]+1}], {base} offset:{off}
        ds_read_b64_tr_b16 v[{F[t]+2}:{F[t]+3}], {base} offset:{off+512}
        """)

    nvm = 48
    for c in range(8):
        if c < 7:
            done = 6 * (c + 1) + 2
        else:
            done = 48
        extra = nvm - 48
        p(f"s_waitcnt vmcnt({48 - done + extra})")
        p("s_barrier")
        if c == 0:
            for t in range(4):
                blk_reads(t, 0, 0)
        if c == 2:
            for i in range(4):
                p(f"""
                s_lshl_b32 s30, s16, 6
                s_add_u32 s30, s30, {16*i}
                s_lshl_b32 s29, s30, 6
                s_cmp_ge_u32 s30, 256
                s_cselect_b32 s19, {SLOT - 16384}, 0
                s_add_u32 s29, s29, s19
                s_mov_b32 m0, s29
                s_mul_i32 s30, s30, 3072
                buffer_load_dwordx4 v4, s[32:35], s30 offen lds
                """)
            nvm += 4
        for kk in range(4):
            K = 4 * c + kk
            last = (K == 31)
            for t in range(4):
                p(f"s_waitcnt lgkmcnt({6 if not last else 6 - 2*t})")
                srcc = '0' if K == 0 else f'v[{ACC[t]}:{ACC[t]+15}]'
                p(f"v_mfma_f32_32x32x16_bf16 v[{ACC[t]}:{ACC[t]+15}], v[{F[t]}:{F[t]+3}], a[{4*K}:{4*K+3}], {srcc}")
                if not last:
                    if kk < 3:
                        blk_reads(t, c, kk + 1)
                    else:
                        blk_reads(t, c + 1, 0)

    T0, T1 = 'v96', 'v97'
    p(f"""
    s_cmp_ge_u32 s14, 28
    s_cbranch_scc1 L_k1_qepi
    """)
    p(f"""
    s_mul_i32 s30, s31, 112
    s_lshl_b32 s29, s14, 2
    s_add_u32 s30, s30, s29
    s_lshl_b32 s30, s30, 10
    s_add_u32 s30, s30, {WS_H}
    """)
    for t in range(4):
        a = ACC[t]
        for n in range(4):
            g0, g1, u0, u1 = a + 2 * n, a + 2 * n + 1, a + 8 + 2 * n, a + 9 + 2 * n
            p(f"""
            v_cvt_pk_bf16_f32 {T0}, v{g0}, v{g1}
            v_cvt_pk_bf16_f32 {T1}, v{u0}, v{u1}
            """)
            k1_unpack(p, 'v98', 'v99', T0)
            k1_unpack(p, 'v100', 'v101', T1)
            p(f"""
            v_pk_mul_f32 v[102:103], v[98:99], v[98:99]
            v_pk_fma_f32 v[102:103], v[102:103], s[42:43], v[104:105]
            """.replace('v[104:105]', 's[40:41]') if False else f"""
            v_pk_mul_f32 v[102:103], v[98:99], v[98:99]
            v_pk_mul_f32 v[102:103], v[102:103], s[42:43]
            v_pk_add_f32 v[102:103], v[102:103], s[40:41]
            v_pk_mul_f32 v[102:103], v[102:103], v[98:99]
            v_exp_f32 v102, v102
            v_exp_f32 v103, v103
            v_pk_add_f32 v[102:103], v[102:103], s[44:45]
            v_rcp_f32 v102, v102
            v_rcp_f32 v103, v103
            v_pk_mul_f32 v[102:103], v[102:103], v[98:99]
            v_cvt_pk_bf16_f32 {T0}, v102, v103
            """)
            k1_unpack(p, 'v102', 'v103', T0)
            p(f"""
            v_pk_mul_f32 v[102:103], v[102:103], v[100:101]
            v_cvt_pk_bf16_f32 v{104+n}, v102, v103
            """)
        p(f"buffer_store_dwordx4 v[104:107], v7, s[20:23], s30 offen offset:{1024*t}")
    p("s_branch L_k1_kvphase")
    p.raw('L_k1_qepi:')
    p(f"""
    s_lshl_b32 s30, s31, 5
    s_sub_u32 s29, s14, 28
    s_lshl_b32 s29, s29, 3
    s_add_u32 s30, s30, s29
    s_lshl_b32 s30, s30, 10
    s_add_u32 s30, s30, {WS_PQ}
    s_add_u32 s29, s30, 4096
    """)

    def phi_pair(dst, a0, a1):
        p(f"v_cvt_pk_bf16_f32 {T0}, v{a0}, v{a1}")
        k1_unpack(p, 'v98', 'v99', T0)
        p(f"""
        v_pk_mul_f32 v[100:101], v[98:99], s[46:47]
        v_pk_add_f32 v[102:103], v[98:99], s[44:45]
        v_exp_f32 v100, v100
        v_exp_f32 v101, v101
        v_cmp_lt_f32 vcc, 0, v98
        v_cndmask_b32 v100, v100, v102, vcc
        v_cmp_lt_f32 vcc, 0, v99
        v_cndmask_b32 v101, v101, v103, vcc
        v_cvt_pk_bf16_f32 {T0}, v100, v101
        """)
        k1_unpack(p, 'v100', 'v101', T0)
        p(f"""
        v_pk_add_f32 v[100:101], v[100:101], s[48:49]
        v_cvt_pk_bf16_f32 {dst}, v100, v101
        """)

    for t in range(4):
        a = ACC[t]
        for hh in range(2):
            for n in range(4):
                phi_pair(f'v{104+n}', a + 8 * hh + 2 * n, a + 8 * hh + 2 * n + 1)
            p(f"buffer_store_dwordx4 v[104:107], v7, s[20:23], s{30 - hh} offen offset:{1024*t}")

    p.raw('L_k1_kvphase:')
    p("""
    s_nop 7
    s_waitcnt vmcnt(0)
    s_barrier
    """)

    def kv_reads(slot_f, K):
        row0 = 16 * K
        off = (row0 % 256) * 64 + (SLOT if row0 >= 256 else 0)
        p(f"""
        ds_read_b64_tr_b16 v[{F[slot_f]}:{F[slot_f]+1}], v6 offset:{off}
        ds_read_b64_tr_b16 v[{F[slot_f]+2}:{F[slot_f]+3}], v6 offset:{off+256}
        """)

    for K in range(3):
        kv_reads(K, K)
    for K in range(32):
        fs = K & 3
        outstanding_after = min(3, 31 - K)
        p(f"s_waitcnt lgkmcnt({2*min(2, 31-K) if K >= 29 else 4})")
        srcc = '0' if K == 0 else 'v[32:47]'
        p(f"v_mfma_f32_32x32x16_bf16 v[32:47], a[{4*K}:{4*K+3}], v[{F[fs]}:{F[fs]+3}], {srcc}")
        if K + 3 < 32:
            kv_reads((K + 3) & 3, K + 3)

    for n in range(8):
        a0, a1 = 32 + 2 * n, 33 + 2 * n
        phi_pair('v104', a0, a1)
        p(f"""
        v_cvt_pk_bf16_f32 v105, v{a0}, v{a1}
        v_cndmask_b32 v{48+n}, v105, v104, s[50:51]
        """)
    p(f"""
    v_mov_b32 v96, 0x3f803f80
    v_mov_b32 v97, 0x3f803f80
    v_mov_b32 v98, 0x3f803f80
    v_mov_b32 v99, 0x3f803f80
    v_mfma_f32_32x32x16_bf16 v[64:79], v[48:51], v[48:51], 0
    v_mfma_f32_32x32x16_bf16 v[80:95], v[48:51], v[96:99], 0
    v_mfma_f32_32x32x16_bf16 v[64:79], v[52:55], v[52:55], v[64:79]
    v_mfma_f32_32x32x16_bf16 v[80:95], v[52:55], v[96:99], v[80:95]
    s_lshl_b32 s30, s31, 5
    s_add_u32 s30, s30, s14
    s_lshl_b32 s30, s30, 11
    s_add_u32 s30, s30, {WS_KVP}
    """)
    for s in range(8):
        p(f"v_cndmask_b32 v{100+s}, v{72+s}, v{88+s}, s[50:51]")
    p(f"""
    buffer_store_dwordx4 v[100:103], v7, s[20:23], s30 offen
    buffer_store_dwordx4 v[104:107], v7, s[20:23], s30 offen offset:1024
    """)
    p.raw('L_k1_end:')
    p('s_endpgm')
    n = p.hazard_pass()
    return p.text(), KD.format(name='k1_kernel', vgpr=256, sgpr=64, acc=128)


def gen_kr():
    p = Prog()
    p.raw('kr_kernel:')
    p(f"""
    s_cmp_ge_u32 s2, 32
    s_cbranch_scc1 L_kr_end
    s_load_dwordx2 s[4:5], s[0:1], 72
    v_lshrrev_b32 v1, 7, v0
    v_lshlrev_b32 v1, 10, v1
    v_bfe_u32 v2, v0, 1, 6
    v_lshlrev_b32 v2, 4, v2
    v_and_b32 v3, 1, v0
    v_lshlrev_b32 v3, 3, v3
    v_add3_u32 v1, v1, v2, v3
    s_waitcnt lgkmcnt(0)
    s_mov_b32 s8, s4
    s_mov_b32 s9, s5
    s_mov_b32 s10, {WS_SIZE}
    s_mov_b32 s11, 0x00020000
    s_lshl_b32 s12, s2, 11
    s_add_u32 s12, s12, {WS_KVP}
    """)
    for rt in range(64):
        if rt == 48:
            p("s_waitcnt vmcnt(16)")
        p(f"""
        buffer_load_dwordx2 v[{8+2*rt}:{9+2*rt}], v1, s[8:11], s12 offen
        s_add_u32 s12, s12, 65536
        """)
    p("s_waitcnt vmcnt(0)")
    p("v_mov_b32 v4, v8\nv_mov_b32 v5, v9")
    for rt in range(1, 64):
        p(f"v_pk_add_f32 v[4:5], v[4:5], v[{8+2*rt}:{9+2*rt}]")
    p(f"""
    v_cvt_pk_bf16_f32 v6, v4, v5
    v_lshrrev_b32 v1, 7, v0
    v_lshlrev_b32 v1, 3, v1
    v_bfe_u32 v2, v0, 1, 6
    v_lshlrev_b32 v2, 4, v2
    v_and_b32 v3, 1, v0
    v_lshlrev_b32 v3, 2, v3
    v_add3_u32 v1, v1, v2, v3
    s_lshl_b32 s12, s2, 10
    s_add_u32 s12, s12, {WS_KVZ}
    buffer_store_dword v6, v1, s[8:11], s12 offen
    """)
    p.raw('L_kr_end:')
    p('s_endpgm')
    p.hazard_pass()
    return p.text(), KD.format(name='kr_kernel', vgpr=144, sgpr=24, acc=144)


K2_NS = 5
K2_D = 4
K2_STAGE_BYTES = 4 * K2_NS * 2048
K2_LDS = K2_STAGE_BYTES + 12 * 2 * 4096


def gen_k2():
    p = Prog()
    p.raw('k2_kernel:')
    p(f"""
    s_cmp_ge_u32 s2, 256
    s_cbranch_scc1 L_k2_end
    s_load_dwordx2 s[4:5], s[0:1], 0
    s_load_dwordx2 s[6:7], s[0:1], 16
    s_load_dwordx2 s[8:9], s[0:1], 48
    s_load_dwordx2 s[10:11], s[0:1], 56
    s_load_dwordx2 s[12:13], s[0:1], 72
    v_lshrrev_b32 v1, 6, v0
    v_and_b32 v2, 63, v0
    s_and_b32 s14, s2, 7
    s_lshr_b32 s15, s2, 3
    s_lshl_b32 s16, s14, 2
    s_and_b32 s17, s15, 3
    s_add_u32 s16, s16, s17
    s_lshr_b32 s17, s15, 2
    v_readfirstlane_b32 s18, v1
    s_mov_b32 s44, 1.0
    s_mov_b32 s45, 1.0
    s_mov_b32 s46, {f32bits(-LOG2E)}
    s_mov_b32 s47, {f32bits(-LOG2E)}
    s_waitcnt lgkmcnt(0)
    """)
    p(f"""
    s_mov_b32 s20, s12
    s_mov_b32 s21, s13
    s_mov_b32 s22, {WS_SIZE}
    s_mov_b32 s23, 0x00020000
    s_mov_b32 s24, s8
    s_mov_b32 s25, s9
    s_mov_b32 s26, 1835008
    s_mov_b32 s27, 0x00020000
    s_mov_b32 s28, s6
    s_mov_b32 s29, s7
    s_mov_b32 s30, 524288
    s_mov_b32 s31, 0x00020000
    s_mov_b32 s32, s4
    s_mov_b32 s33, s5
    s_mov_b32 s34, 2097152
    s_mov_b32 s35, 0x00020000
    s_mov_b32 s36, s10
    s_mov_b32 s37, s11
    s_mov_b32 s38, 2097152
    s_mov_b32 s39, 0x00020000
    """)
    p(f"""
    v_lshrrev_b32 v3, 3, v2
    v_lshlrev_b32 v3, 10, v3
    v_bfe_u32 v4, v2, 1, 2
    v_bfe_u32 v5, v2, 4, 1
    v_lshlrev_b32 v5, 1, v5
    v_xor_b32 v4, v4, v5
    v_lshlrev_b32 v4, 5, v4
    v_and_b32 v5, 1, v2
    v_lshlrev_b32 v5, 4, v5
    v_add3_u32 v3, v3, v4, v5
    s_lshl_b32 s19, s17, 7
    v_add_u32 v3, s19, v3
    """)
    p(f"""
    v_lshrrev_b32 v8, 5, v2
    v_lshlrev_b32 v8, 2, v8
    v_bfe_u32 v9, v2, 2, 2
    v_add_u32 v8, v8, v9
    v_lshlrev_b32 v8, 7, v8
    v_and_b32 v9, 3, v2
    v_lshlrev_b32 v9, 3, v9
    v_add_u32 v8, v8, v9
    s_mul_i32 s19, s18, {K2_NS*2048}
    v_add_u32 v8, s19, v8
    v_bfe_u32 v9, v2, 4, 1
    v_bfe_u32 v10, v2, 3, 1
    v_lshlrev_b32 v10, 1, v10
    """)
    for ct in range(2):
        p(f"""
        v_add_u32 v11, {2*ct}, v9
        v_xor_b32 v11, v11, v10
        v_lshlrev_b32 v11, 5, v11
        v_add_u32 v{4+ct}, v8, v11
        """)
    p(f"""
    v_lshlrev_b32 v6, 4, v2
    """)
    p(f"""
    s_lshr_b32 s40, s18, 1
    s_lshl_b32 s41, s16, 1
    s_add_u32 s40, s40, s41
    s_lshl_b32 s40, s40, 5
    v_and_b32 v7, 31, v2
    v_add_u32 v7, s40, v7
    v_lshlrev_b32 v7, 10, v7
    v_lshrrev_b32 v8, 5, v2
    v_lshlrev_b32 v8, 3, v8
    v_add_u32 v7, v7, v8
    s_lshl_b32 s40, s17, 7
    s_and_b32 s41, s18, 1
    s_lshl_b32 s41, s41, 6
    s_add_u32 s40, s40, s41
    v_add_u32 v7, s40, v7
    """)
    vm = []

    def vmem(text, tag):
        p(text)
        vm.append(tag)

    def wait_tag(tag):
        idx = max(i for i, t in enumerate(vm) if t == tag)
        p(f"s_waitcnt vmcnt({len(vm) - 1 - idx})")

    for q in range(4):
        vmem(f"buffer_load_dwordx2 v[{8+2*q}:{9+2*q}], v7, s[32:35], 0 offen offset:{16*q}", 'x')

    p(f"""
    s_lshl_b32 s48, s16, 1
    s_mul_i32 s48, s48, 112
    s_mul_i32 s49, s18, 28
    s_add_u32 s48, s48, s49
    s_lshl_b32 s48, s48, 10
    s_add_u32 s48, s48, {WS_H}
    s_mul_i32 s50, s18, {28*16384}
    s_mul_i32 s51, s18, {K2_NS*2048}
    s_lshl_b32 s52, s16, 1
    s_lshl_b32 s52, s52, 5
    s_lshl_b32 s53, s18, 3
    s_add_u32 s52, s52, s53
    s_lshl_b32 s52, s52, 10
    s_add_u32 s52, s52, {WS_PQ}
    s_lshl_b32 s54, s18, 13
    s_add_u32 s54, s54, {WS_KVZ}
    s_lshl_b32 s55, s18, 17
    """)
    steps = [('h', i) for i in range(28)] + [('o', i) for i in range(8)]
    NST = len(steps)
    RING = K2_D + 1
    FR = [192 + 12 * i for i in range(RING)]
    BF = [16, 24]
    ACCF = [64 + 16 * i for i in range(4)]
    ACCS = [128 + 16 * i for i in range(4)]

    def issue(n):
        kind, i = steps[n]
        fr = FR[n % RING]
        st = n % K2_NS
        if kind == 'h':
            p(f"s_add_u32 s41, s48, {1024*i}")
            vmem(f"buffer_load_dwordx4 v[{fr}:{fr+3}], v6, s[20:23], s41 offen", n)
            p(f"s_add_u32 s41, s41, {112*1024}")
            vmem(f"buffer_load_dwordx4 v[{fr+4}:{fr+7}], v6, s[20:23], s41 offen", n)
            p(f"""
            s_add_u32 m0, s51, {st*2048}
            s_add_u32 s41, s50, {16384*i}
            """)
            vmem(f"buffer_load_dwordx4 v3, s[24:27], s41 offen lds", n)
            p(f"""
            s_add_u32 m0, s51, {st*2048+1024}
            s_add_u32 s41, s41, 8192
            """)
            vmem(f"buffer_load_dwordx4 v3, s[24:27], s41 offen lds", n)
        else:
            p(f"s_add_u32 s41, s52, {1024*i}")
            vmem(f"buffer_load_dwordx4 v[{fr}:{fr+3}], v6, s[20:23], s41 offen", n)
            p(f"s_add_u32 s41, s41, {32*1024}")
            vmem(f"buffer_load_dwordx4 v[{fr+4}:{fr+7}], v6, s[20:23], s41 offen", n)
            p(f"s_add_u32 s41, s54, {1024*i}")
            vmem(f"buffer_load_dwordx4 v[{fr+8}:{fr+11}], v6, s[20:23], s41 offen", n)
            p(f"""
            s_add_u32 m0, s51, {st*2048}
            s_add_u32 s41, s55, {16384*i}
            """)
            vmem(f"buffer_load_dwordx4 v3, s[28:31], s41 offen lds", n)
            p(f"""
            s_add_u32 m0, s51, {st*2048+1024}
            s_add_u32 s41, s41, 8192
            """)
            vmem(f"buffer_load_dwordx4 v3, s[28:31], s41 offen lds", n)

    def breads(n):
        st = n % K2_NS
        bf = BF[n & 1]
        for ct in range(2):
            for ri in range(2):
                p(f"ds_read_b64_tr_b16 v[{bf+4*ct+2*ri}:{bf+4*ct+2*ri+1}], v{4+ct} offset:{st*2048 + ri*1024}")

    first_mfma = {}

    def mf(acc, a, b, key):
        srcc = '0' if key not in first_mfma else f'v[{acc}:{acc+15}]'
        first_mfma[key] = True
        p(f"v_mfma_f32_32x32x16_bf16 v[{acc}:{acc+15}], {a}, {b}, {srcc}")

    for n in range(min(K2_D, NST)):
        issue(n)
    wait_tag(0)
    breads(0)
    for n in range(NST):
        kind, i = steps[n]
        if n + K2_D < NST:
            issue(n + K2_D)
        if n + 1 < NST:
            wait_tag(n + 1)
            breads(n + 1)
            p("s_waitcnt lgkmcnt(4)")
        else:
            p("s_waitcnt lgkmcnt(0)")
        fr = FR[n % RING]
        bf = BF[n & 1]
        if kind == 'h':
            for rt in range(2):
                for ct in range(2):
                    mf(ACCF[2*rt+ct], f"v[{bf+4*ct}:{bf+4*ct+3}]", f"v[{fr+4*rt}:{fr+4*rt+3}]", ('f', 2*rt+ct))
        else:
            for rt in range(2):
                D = 32 + 16 * rt
                p(f"v_mfma_f32_32x32x16_bf16 v[{D}:{D+15}], v[{fr+8}:{fr+11}], v[{fr+4*rt}:{fr+4*rt+3}], 0")
            for rt in range(2):
                D = 32 + 16 * rt
                p(f"""
                v_cvt_pk_bf16_f32 v{D+9}, v{D+8}, v{D+8}
                v_lshlrev_b32 v{D+9}, 16, v{D+9}
                v_add_f32 v{D+9}, {f32bits(1e-6)}, v{D+9}
                v_cvt_pk_bf16_f32 v{D+9}, v{D+9}, v{D+9}
                v_lshlrev_b32 v{D+9}, 16, v{D+9}
                v_rcp_f32 v{D+10}, v{D+9}
                v_fma_f32 v{D+11}, -v{D+9}, v{D+10}, 1.0
                v_fma_f32 v{D+10}, v{D+11}, v{D+10}, v{D+10}
                """)
                for j in range(4):
                    p(f"""
                    v_cvt_pk_bf16_f32 v{D+12}, v{D+2*j}, v{D+2*j+1}
                    v_lshlrev_b32 v{D+13}, 16, v{D+12}
                    v_and_b32 v{D+14}, 0xffff0000, v{D+12}
                    v_mul_f32 v{D+13}, v{D+13}, v{D+10}
                    v_mul_f32 v{D+14}, v{D+14}, v{D+10}
                    v_cvt_pk_bf16_f32 v{fr+4*rt+j}, v{D+13}, v{D+14}
                    """)
            for rt in range(2):
                for ct in range(2):
                    mf(ACCS[2*rt+ct], f"v[{bf+4*ct}:{bf+4*ct+3}]", f"v[{fr+4*rt}:{fr+4*rt+3}]", ('s', 2*rt+ct))

    p("s_nop 7\ns_nop 4")
    p(f"v_add_u32 v20, {K2_STAGE_BYTES}, v6")
    for w in range(4):
        lab = f'L_k2_w{w}'
        p(f"s_cmp_lg_u32 s18, {w}\ns_cbranch_scc1 {lab}_skip")
        for qd in range(4):
            if qd == w:
                continue
            slot = w if w < qd else w - 1
            p(f"v_add_u32 v21, {qd * 24576}, v20")
            for kind, accs in enumerate((ACCF, ACCS)):
                blk = (slot * 2 + kind) * 4096
                for q in range(4):
                    p(f"ds_write_b128 v21, v[{accs[qd]+4*q}:{accs[qd]+4*q+3}] offset:{blk + q*1024}")
        p.raw(f'{lab}_skip:')
    p("""
    s_waitcnt lgkmcnt(0)
    s_barrier
    """)
    for w in range(4):
        lab = f'L_k2_r{w}'
        p(f"s_cmp_lg_u32 s18, {w}\ns_cbranch_scc1 {lab}_skip")
        for kind, accs in enumerate((ACCF, ACCS)):
            for r in range(16):
                p(f"v_mov_b32 v{32 + 16*kind + r}, v{accs[w] + r}")
        p(f"v_add_u32 v21, {w * 24576}, v20")
        for kind in range(2):
            for slot in range(3):
                blk = (slot * 2 + kind) * 4096
                for q in range(4):
                    d = 160 + (kind * 3 + slot) * 16 + 4 * q
                    p(f"ds_read_b128 v[{d}:{d+3}], v21 offset:{blk + q*1024}")
        p.raw(f'{lab}_skip:')
    p("s_waitcnt lgkmcnt(0)")
    for kind in range(2):
        for slot in range(3):
            for r2 in range(8):
                a = 32 + 16 * kind + 2 * r2
                b = 160 + (kind * 3 + slot) * 16 + 2 * r2
                p(f"v_pk_add_f32 v[{a}:{a+1}], v[{a}:{a+1}], v[{b}:{b+1}]")
    p("s_waitcnt vmcnt(0)")
    for q in range(4):
        for h2 in range(2):
            f0, f1 = 32 + 4 * q + 2 * h2, 33 + 4 * q + 2 * h2
            s0, s1 = 48 + 4 * q + 2 * h2, 49 + 4 * q + 2 * h2
            xv = 8 + 2 * q + h2
            p(f"""
            v_cvt_pk_bf16_f32 v20, v{f0}, v{f1}
            v_lshlrev_b32 v22, 16, v20
            v_and_b32 v23, 0xffff0000, v20
            v_pk_mul_f32 v[24:25], v[22:23], s[46:47]
            v_exp_f32 v24, v24
            v_exp_f32 v25, v25
            v_pk_add_f32 v[24:25], v[24:25], s[44:45]
            v_rcp_f32 v24, v24
            v_rcp_f32 v25, v25
            v_pk_mul_f32 v[24:25], v[24:25], v[22:23]
            v_cvt_pk_bf16_f32 v20, v24, v25
            v_lshlrev_b32 v24, 16, v20
            v_and_b32 v25, 0xffff0000, v20
            v_cvt_pk_bf16_f32 v20, v{s0}, v{s1}
            v_lshlrev_b32 v22, 16, v20
            v_and_b32 v23, 0xffff0000, v20
            v_pk_mul_f32 v[24:25], v[24:25], v[22:23]
            v_cvt_pk_bf16_f32 v20, v24, v25
            v_lshlrev_b32 v24, 16, v20
            v_and_b32 v25, 0xffff0000, v20
            v_lshlrev_b32 v22, 16, v{xv}
            v_and_b32 v23, 0xffff0000, v{xv}
            v_pk_add_f32 v[24:25], v[24:25], v[22:23]
            v_cvt_pk_bf16_f32 v{26+h2}, v24, v25
            """)
        p(f"buffer_store_dwordx2 v[26:27], v7, s[36:39], 0 offen offset:{16*q}")
    p.raw('L_k2_end:')
    p('s_endpgm')
    p.hazard_pass()
    return p.text(), KD.format(name='k2_kernel', vgpr=256, sgpr=64, acc=256)


def build(kernels, launches):
    hdr = open('cdna_kernels/' + NAME + '.s.ref').read().split('; Override launch geometry')[0]
    out = hdr
    for l in launches:
        out += l + '\n'
    out += '.amdgcn_target "amdgcn-amd-amdhsa--gfx950"\n.text\n'
    for name, (code, kd) in kernels.items():
        out += f'.globl {name}\n.p2align 8\n.type {name},@function\n' + code
    out += '.section .rodata,"a"\n'
    for name, (code, kd) in kernels.items():
        out += '.p2align 6\n' + kd
    return out


if __name__ == '__main__':
    kernels = {}
    launches = []
    kernels['ln_kernel'] = gen_ln()
    launches.append('; @launch kernel=ln_kernel grid=(512,1,1) block=(256,1,1) lds=0')
    kernels['k1_kernel'] = gen_k1()
    launches.append(f'; @launch kernel=k1_kernel grid=(256,1,1) block=(512,1,1) lds={K1_LDS}')
    kernels['kr_kernel'] = gen_kr()
    launches.append('; @launch kernel=kr_kernel grid=(32,1,1) block=(256,1,1) lds=0')
    kernels['k2_kernel'] = gen_k2()
    launches.append(f'; @launch kernel=k2_kernel grid=(256,1,1) block=(256,1,1) lds={K2_LDS}')
    txt = build(kernels, launches)
    open('cdna_kernels/' + NAME + '.s', 'w').write(txt)
    print('written', len(txt), 'bytes')
```

```python
import sys
sys.path.insert(0, 'dev')
from asmdsl import Prog

NAME = 'recurrent_scan__linear_attn_block__geglu_ffn__prompt'

WS_XN = 0
WS_H = 2 * 1024 * 1024
WS_PQ = WS_H + 64 * 112 * 1024
WS_ACC = WS_PQ + 64 * 32 * 1024
WS_KVZ = WS_ACC + 32 * 2048
WS_SIZE = 268435456

KD = '''.amdhsa_kernel {name}
  .amdhsa_next_free_vgpr {vgpr}
  .amdhsa_next_free_sgpr {sgpr}
  .amdhsa_accum_offset {acc}
  .amdhsa_group_segment_fixed_size 0
  .amdhsa_kernarg_size 80
  .amdhsa_user_sgpr_count 2
  .amdhsa_user_sgpr_kernarg_segment_ptr 1
  .amdhsa_system_sgpr_workgroup_id_x 1
.end_amdhsa_kernel
'''


def f32bits(x):
    import struct
    return '0x%08x' % struct.unpack('<I', struct.pack('<f', x))[0]


STAMPS = '--stamps' in sys.argv
WS_DBG = WS_KVZ + 65536
STAMP_S0 = 80


def stamp(p, idx):
    if not STAMPS:
        return
    p(f"""
    s_memtime s[78:79]
    s_waitcnt lgkmcnt(0)
    s_mov_b32 s{STAMP_S0+idx}, s78
    """)


def rstamp(p, idx):
    if not STAMPS:
        return
    p(f"""
    s_memrealtime s[78:79]
    s_waitcnt lgkmcnt(0)
    s_mov_b32 s{STAMP_S0+idx}, s78
    """)


def stamp_flush(p, nst, srd, swave, kid):
    if not STAMPS:
        return
    p(f"""
    s_lshl_b32 s76, s2, 3
    s_add_u32 s76, s76, {swave}
    s_lshl_b32 s76, s76, 6
    s_add_u32 s76, s76, {WS_DBG + kid * 256 * 8 * 64}
    v_mov_b32 v0, 0
    """)
    for i in range(nst):
        p(f"""
        v_mov_b32 v1, s{STAMP_S0+i}
        buffer_store_dword v1, v0, {srd}, s76 offen offset:{4*i}
        """)


def allreduce_sum(p, v, t, sbase):
    p(f'''
    v_add_f32_dpp {t}, {v}, {v} quad_perm:[1,0,3,2] row_mask:0xf bank_mask:0xf
    v_add_f32_dpp {v}, {t}, {t} quad_perm:[2,3,0,1] row_mask:0xf bank_mask:0xf
    v_add_f32_dpp {t}, {v}, {v} row_ror:4 row_mask:0xf bank_mask:0xf
    v_add_f32_dpp {v}, {t}, {t} row_ror:8 row_mask:0xf bank_mask:0xf
    v_readlane_b32 s{sbase}, {v}, 0
    v_readlane_b32 s{sbase+1}, {v}, 16
    v_readlane_b32 s{sbase+2}, {v}, 32
    v_readlane_b32 s{sbase+3}, {v}, 48
    v_mov_b32 {v}, s{sbase}
    v_add_f32 {v}, s{sbase+1}, {v}
    v_add_f32 {v}, s{sbase+2}, {v}
    v_add_f32 {v}, s{sbase+3}, {v}
    ''')


def rb(p, dst, src, tmp):
    p(f'''
    v_cvt_pk_bf16_f32 {tmp}, {src}, {src}
    v_lshlrev_b32 {dst}, 16, {tmp}
    ''')


def gen_ln():
    p = Prog()
    p.raw('ln_kernel:')
    p(f'''
    s_cmp_ge_u32 s2, 512
    s_cbranch_scc1 L_ln_end
    s_load_dwordx2 s[4:5], s[0:1], 0
    s_load_dwordx2 s[6:7], s[0:1], 72
    v_and_b32 v1, 63, v0
    v_lshrrev_b32 v2, 6, v0
    s_lshl_b32 s3, s2, 2
    v_add_u32 v2, s3, v2
    v_lshlrev_b32 v3, 10, v2
    v_lshlrev_b32 v4, 4, v1
    v_add_u32 v3, v3, v4
    s_waitcnt lgkmcnt(0)
    s_mov_b32 s8, s4
    s_mov_b32 s9, s5
    s_mov_b32 s10, 2097152
    s_mov_b32 s11, 0x00020000
    s_mov_b32 s12, s6
    s_mov_b32 s13, s7
    s_mov_b32 s14, {WS_SIZE}
    s_mov_b32 s15, 0x00020000
    buffer_load_dwordx4 v[8:11], v3, s[8:11], 0 offen
    s_cmp_ge_u32 s2, 64
    s_cbranch_scc1 L_ln_nozero
    v_lshlrev_b32 v5, 2, v0
    s_lshl_b32 s3, s2, 10
    s_add_u32 s3, s3, {WS_ACC}
    v_mov_b32 v6, 0
    buffer_store_dword v6, v5, s[12:15], s3 offen
    ''')
    p.raw('L_ln_nozero:')
    p(f'''
    v_lshrrev_b32 v5, 5, v2
    v_lshlrev_b32 v5, 5, v5
    v_lshrrev_b32 v6, 1, v1
    v_add_u32 v5, v5, v6
    v_lshlrev_b32 v5, 10, v5
    v_and_b32 v6, 1, v1
    v_lshlrev_b32 v6, 5, v6
    v_and_b32 v7, 31, v2
    v_add_u32 v6, v6, v7
    v_lshlrev_b32 v6, 4, v6
    v_add_u32 v5, v5, v6
    s_waitcnt vmcnt(0)
    ''')
    for j in range(4):
        p(f'''
        v_lshlrev_b32 v{16+2*j}, 16, v{8+j}
        v_and_b32 v{17+2*j}, 0xffff0000, v{8+j}
        ''')
    p('''
    v_add_f32 v24, v16, v17
    v_add_f32 v25, v18, v19
    v_add_f32 v26, v20, v21
    v_add_f32 v27, v22, v23
    v_add_f32 v24, v24, v25
    v_add_f32 v26, v26, v27
    v_add_f32 v24, v24, v26
    ''')
    allreduce_sum(p, 'v24', 'v25', 16)
    p('v_mul_f32 v24, 0x3b000000, v24')
    p('v_mov_b32 v26, 0')
    for j in range(8):
        p(f'''
        v_sub_f32 v27, v{16+j}, v24
        v_fmac_f32 v26, v27, v27
        ''')
    allreduce_sum(p, 'v26', 'v25', 16)
    p('v_mul_f32 v26, 0x3b000000, v26')
    rb(p, 'v28', 'v24', 'v25')
    rb(p, 'v29', 'v26', 'v25')
    p(f'v_add_f32 v29, {f32bits(1e-5)}, v29')
    rb(p, 'v29', 'v29', 'v25')
    p('v_sqrt_f32 v29, v29')
    rb(p, 'v29', 'v29', 'v25')
    p('''
    v_rcp_f32 v30, v29
    v_fma_f32 v31, -v29, v30, 1.0
    v_fma_f32 v30, v31, v30, v30
    ''')
    for j in range(4):
        a, b = 16 + 2 * j, 17 + 2 * j
        p(f'''
        v_sub_f32 v{a}, v{a}, v28
        v_sub_f32 v{b}, v{b}, v28
        v_cvt_pk_bf16_f32 v32, v{a}, v{b}
        v_lshlrev_b32 v{a}, 16, v32
        v_and_b32 v{b}, 0xffff0000, v32
        v_mul_f32 v33, v{a}, v30
        v_mul_f32 v34, v{b}, v30
        v_fma_f32 v35, -v33, v29, v{a}
        v_fma_f32 v36, -v34, v29, v{b}
        v_fma_f32 v33, v35, v30, v33
        v_fma_f32 v34, v36, v30, v34
        v_cvt_pk_bf16_f32 v{12+j}, v33, v34
        ''')
    p(f'''
    buffer_store_dwordx4 v[12:15], v5, s[12:15], 0 offen
    ''')
    p.raw('L_ln_end:')
    p('s_endpgm')
    n = p.hazard_pass()
    return p.text(), KD.format(name='ln_kernel', vgpr=40, sgpr=24, acc=40)


SLOT = 16512
RREG = 8256
K1_LDS = 8 * SLOT
C1 = -2.0 * 1.4426950408889634 * 0.7978845608028654
C2 = C1 * 0.044715
LOG2E = 1.4426950408889634


def k1_unpack(p, x0, x1, src):
    p(f"""
    v_lshlrev_b32 {x0}, 16, {src}
    v_and_b32 {x1}, 0xffff0000, {src}
    """)


def gen_k1():
    p = Prog()
    p.raw('k1_kernel:')
    p(f"""
    s_cmp_ge_u32 s2, 256
    s_cbranch_scc1 L_k1_end
    s_load_dwordx2 s[4:5], s[0:1], 8
    s_load_dwordx2 s[6:7], s[0:1], 32
    s_load_dwordx2 s[8:9], s[0:1], 40
    s_load_dwordx2 s[10:11], s[0:1], 72
    v_lshrrev_b32 v1, 6, v0
    v_and_b32 v2, 63, v0
    s_and_b32 s12, s2, 7
    s_lshr_b32 s13, s2, 3
    s_lshl_b32 s14, s12, 2
    s_and_b32 s15, s13, 3
    s_add_u32 s14, s14, s15
    s_lshr_b32 s15, s13, 2
    v_readfirstlane_b32 s16, v1
    s_mov_b32 s40, {f32bits(C1)}
    s_mov_b32 s41, {f32bits(C1)}
    s_mov_b32 s42, {f32bits(C2)}
    s_mov_b32 s43, {f32bits(C2)}
    s_mov_b32 s44, 1.0
    s_mov_b32 s45, 1.0
    s_mov_b32 s46, {f32bits(LOG2E)}
    s_mov_b32 s47, {f32bits(LOG2E)}
    s_mov_b32 s48, {f32bits(1e-6)}
    s_mov_b32 s49, {f32bits(1e-6)}
    s_mov_b32 s50, 0xffff0000
    s_mov_b32 s51, 0xffff0000
    s_waitcnt lgkmcnt(0)
    """)
    p(f"""
    s_mov_b32 s20, s10
    s_mov_b32 s21, s11
    s_mov_b32 s22, {WS_SIZE}
    s_mov_b32 s23, 0x00020000
    s_mov_b32 s32, s4
    s_mov_b32 s33, s5
    s_mov_b32 s34, 1572864
    s_mov_b32 s35, 0x00020000
    s_and_b32 s17, s16, 1
    s_lshr_b32 s18, s16, 1
    s_cmp_ge_u32 s14, 28
    s_cbranch_scc1 L_k1_qsrc
    s_cmp_eq_u32 s17, 0
    s_cselect_b32 s24, s6, s8
    s_cselect_b32 s25, s7, s9
    s_lshl_b32 s19, s14, 7
    s_mov_b32 s28, 3584
    s_mov_b32 s29, 1835008
    s_branch L_k1_srcdone
    """)
    p.raw('L_k1_qsrc:')
    p(f"""
    s_mov_b32 s24, s4
    s_mov_b32 s25, s5
    s_sub_u32 s19, s14, 28
    s_lshl_b32 s19, s19, 8
    s_lshl_b32 s30, s17, 7
    s_add_u32 s19, s19, s30
    s_mov_b32 s28, 3072
    s_mov_b32 s29, 1572864
    """)
    p.raw('L_k1_srcdone:')
    p(f"""
    s_add_u32 s24, s24, s19
    s_addc_u32 s25, s25, 0
    s_sub_u32 s26, s29, s19
    s_mov_b32 s27, 0x00020000
    """)
    p(f"""
    v_lshrrev_b32 v3, 3, v2
    v_mul_lo_u32 v3, v3, s28
    v_bfe_u32 v4, v2, 1, 2
    v_bfe_u32 v5, v2, 4, 1
    v_xor_b32 v4, v4, v5
    v_lshlrev_b32 v4, 5, v4
    v_and_b32 v5, 1, v2
    v_lshlrev_b32 v5, 4, v5
    v_add3_u32 v3, v3, v4, v5
    """)
    p(f"""
    v_lshrrev_b32 v4, 2, v2
    v_mul_u32_u24 v4, 3072, v4
    v_bfe_u32 v5, v2, 1, 1
    v_lshlrev_b32 v5, 10, v5
    v_sub_u32 v5, 2048, v5
    v_add_u32 v4, v4, v5
    v_and_b32 v5, 1, v2
    v_lshlrev_b32 v5, 4, v5
    s_lshl_b32 s30, s14, 5
    v_add3_u32 v4, v4, v5, s30
    """)
    p(f"""
    v_bfe_u32 v5, v2, 4, 1
    v_mul_u32_u24 v5, {RREG}, v5
    v_lshrrev_b32 v6, 5, v2
    v_lshlrev_b32 v6, 3, v6
    v_bfe_u32 v7, v2, 2, 2
    v_add_u32 v6, v6, v7
    v_lshlrev_b32 v6, 7, v6
    v_add_u32 v5, v5, v6
    v_and_b32 v6, 3, v2
    v_lshlrev_b32 v6, 3, v6
    v_add_u32 v5, v5, v6
    v_bfe_u32 v7, v2, 3, 1
    """)
    for t in range(4):
        p(f"""
        v_xor_b32 v6, {t}, v7
        v_lshlrev_b32 v6, 5, v6
        v_add_u32 v{8+t}, v5, v6
        v_add_u32 v{12+t}, {4*SLOT}, v{8+t}
        """)
    p(f"""
    v_lshrrev_b32 v6, 5, v2
    v_lshlrev_b32 v6, 3, v6
    v_bfe_u32 v7, v2, 2, 2
    v_add_u32 v6, v6, v7
    v_lshlrev_b32 v6, 6, v6
    v_bfe_u32 v7, v2, 4, 1
    v_lshlrev_b32 v7, 5, v7
    v_add_u32 v6, v6, v7
    v_and_b32 v7, 3, v2
    v_lshlrev_b32 v7, 3, v7
    v_add_u32 v6, v6, v7
    v_lshlrev_b32 v7, 4, v2
    """)
    p(f"""
    s_lshl_b32 s31, s15, 3
    s_add_u32 s31, s31, s16
    s_lshl_b32 s36, s31, 15
    s_mul_i32 s37, s17, {RREG}
    s_lshl_b32 s30, s18, 11
    s_add_u32 s37, s37, s30
    s_lshl_b32 s30, s18, 4
    s_mul_i32 s38, s30, s28
    s_lshl_b32 s39, s28, 3
    """)
    for c in range(8):
        p(f"""
        s_add_u32 m0, s37, {c*SLOT}
        s_mul_i32 s30, s28, {64*c}
        s_add_u32 s30, s30, s38
        buffer_load_dwordx4 v3, s[24:27], s30 offen lds
        s_add_u32 m0, s37, {c*SLOT + 1024}
        s_add_u32 s30, s30, s39
        buffer_load_dwordx4 v3, s[24:27], s30 offen lds
        """)
        p(f"s_add_u32 s30, s36, {c*4096}")
        for j in range(4):
            p(f"buffer_load_dwordx4 a[{16*c+4*j}:{16*c+4*j+3}], v7, s[20:23], s30 offen offset:{1024*j}")

    stamp(p, 0)
    rstamp(p, 7)
    F = [16, 20, 24, 28]
    ACC = [32, 48, 64, 80]

    def blk_reads(t, c, kk):
        base = f'v{8+t}' if c < 4 else f'v{12+t}'
        off = (c % 4) * SLOT + 2048 * kk
        p(f"""
        ds_read_b64_tr_b16 v[{F[t]}:{F[t]+1}], {base} offset:{off}
        ds_read_b64_tr_b16 v[{F[t]+2}:{F[t]+3}], {base} offset:{off+512}
        """)

    nvm = 48
    for c in range(8):
        if c < 7:
            done = 6 * (c + 1) + 2
        else:
            done = 48
        extra = nvm - 48
        p(f"s_waitcnt vmcnt({48 - done + extra})")
        p("s_barrier")
        if c == 0:
            stamp(p, 1)
            for t in range(4):
                blk_reads(t, 0, 0)
        if c == 2:
            for i in range(4):
                p(f"""
                s_lshl_b32 s30, s16, 6
                s_add_u32 s30, s30, {16*i}
                s_lshl_b32 s29, s30, 6
                s_cmp_ge_u32 s30, 256
                s_cselect_b32 s19, {SLOT - 16384}, 0
                s_add_u32 s29, s29, s19
                s_mov_b32 m0, s29
                s_mul_i32 s30, s30, 3072
                buffer_load_dwordx4 v4, s[32:35], s30 offen lds
                """)
            nvm += 4
        for kk in range(4):
            K = 4 * c + kk
            last = (K == 31)
            for t in range(4):
                p(f"s_waitcnt lgkmcnt({6 if not last else 6 - 2*t})")
                srcc = '0' if K == 0 else f'v[{ACC[t]}:{ACC[t]+15}]'
                p(f"v_mfma_f32_32x32x16_bf16 v[{ACC[t]}:{ACC[t]+15}], v[{F[t]}:{F[t]+3}], a[{4*K}:{4*K+3}], {srcc}")
                if not last:
                    if kk < 3:
                        blk_reads(t, c, kk + 1)
                    else:
                        blk_reads(t, c + 1, 0)

    stamp(p, 2)
    T0, T1 = 'v96', 'v97'
    p(f"""
    s_cmp_ge_u32 s14, 28
    s_cbranch_scc1 L_k1_qepi
    """)
    p(f"""
    s_mul_i32 s30, s31, 112
    s_lshl_b32 s29, s14, 2
    s_add_u32 s30, s30, s29
    s_lshl_b32 s30, s30, 10
    s_add_u32 s30, s30, {WS_H}
    """)
    for t in range(4):
        a = ACC[t]
        for n in range(4):
            g0, g1, u0, u1 = a + 2 * n, a + 2 * n + 1, a + 8 + 2 * n, a + 9 + 2 * n
            p(f"""
            v_cvt_pk_bf16_f32 {T0}, v{g0}, v{g1}
            v_cvt_pk_bf16_f32 {T1}, v{u0}, v{u1}
            """)
            k1_unpack(p, 'v98', 'v99', T0)
            k1_unpack(p, 'v100', 'v101', T1)
            p(f"""
            v_pk_mul_f32 v[102:103], v[98:99], v[98:99]
            v_pk_fma_f32 v[102:103], v[102:103], s[42:43], v[104:105]
            """.replace('v[104:105]', 's[40:41]') if False else f"""
            v_pk_mul_f32 v[102:103], v[98:99], v[98:99]
            v_pk_mul_f32 v[102:103], v[102:103], s[42:43]
            v_pk_add_f32 v[102:103], v[102:103], s[40:41]
            v_pk_mul_f32 v[102:103], v[102:103], v[98:99]
            v_exp_f32 v102, v102
            v_exp_f32 v103, v103
            v_pk_add_f32 v[102:103], v[102:103], s[44:45]
            v_rcp_f32 v102, v102
            v_rcp_f32 v103, v103
            v_pk_mul_f32 v[102:103], v[102:103], v[98:99]
            v_cvt_pk_bf16_f32 {T0}, v102, v103
            """)
            k1_unpack(p, 'v102', 'v103', T0)
            p(f"""
            v_pk_mul_f32 v[102:103], v[102:103], v[100:101]
            v_cvt_pk_bf16_f32 v{104+n}, v102, v103
            """)
        p(f"buffer_store_dwordx4 v[104:107], v7, s[20:23], s30 offen offset:{1024*t}")
    p("s_branch L_k1_kvphase")
    p.raw('L_k1_qepi:')
    p(f"""
    s_lshl_b32 s30, s31, 5
    s_sub_u32 s29, s14, 28
    s_lshl_b32 s29, s29, 3
    s_add_u32 s30, s30, s29
    s_lshl_b32 s30, s30, 10
    s_add_u32 s30, s30, {WS_PQ}
    s_add_u32 s29, s30, 4096
    """)

    def phi_pair(dst, a0, a1):
        p(f"v_cvt_pk_bf16_f32 {T0}, v{a0}, v{a1}")
        k1_unpack(p, 'v98', 'v99', T0)
        p(f"""
        v_pk_mul_f32 v[100:101], v[98:99], s[46:47]
        v_pk_add_f32 v[102:103], v[98:99], s[44:45]
        v_exp_f32 v100, v100
        v_exp_f32 v101, v101
        v_cmp_lt_f32 vcc, 0, v98
        v_cndmask_b32 v100, v100, v102, vcc
        v_cmp_lt_f32 vcc, 0, v99
        v_cndmask_b32 v101, v101, v103, vcc
        v_cvt_pk_bf16_f32 {T0}, v100, v101
        """)
        k1_unpack(p, 'v100', 'v101', T0)
        p(f"""
        v_pk_add_f32 v[100:101], v[100:101], s[48:49]
        v_cvt_pk_bf16_f32 {dst}, v100, v101
        """)

    for t in range(4):
        a = ACC[t]
        for hh in range(2):
            for n in range(4):
                phi_pair(f'v{104+n}', a + 8 * hh + 2 * n, a + 8 * hh + 2 * n + 1)
            p(f"buffer_store_dwordx4 v[104:107], v7, s[20:23], s{30 - hh} offen offset:{1024*t}")

    p.raw('L_k1_kvphase:')
    p("s_nop 7")
    stamp(p, 3)
    p("""
    s_waitcnt vmcnt(0)
    s_barrier
    """)
    stamp(p, 4)

    def kv_reads(slot_f, K):
        row0 = 16 * K
        off = (row0 % 256) * 64 + (SLOT if row0 >= 256 else 0)
        p(f"""
        ds_read_b64_tr_b16 v[{F[slot_f]}:{F[slot_f]+1}], v6 offset:{off}
        ds_read_b64_tr_b16 v[{F[slot_f]+2}:{F[slot_f]+3}], v6 offset:{off+256}
        """)

    for K in range(3):
        kv_reads(K, K)
    for K in range(32):
        fs = K & 3
        outstanding_after = min(3, 31 - K)
        p(f"s_waitcnt lgkmcnt({2*min(2, 31-K) if K >= 29 else 4})")
        srcc = '0' if K == 0 else 'v[32:47]'
        p(f"v_mfma_f32_32x32x16_bf16 v[32:47], a[{4*K}:{4*K+3}], v[{F[fs]}:{F[fs]+3}], {srcc}")
        if K + 3 < 32:
            kv_reads((K + 3) & 3, K + 3)

    stamp(p, 5)
    for n in range(8):
        a0, a1 = 32 + 2 * n, 33 + 2 * n
        phi_pair('v104', a0, a1)
        p(f"""
        v_cvt_pk_bf16_f32 v105, v{a0}, v{a1}
        v_cndmask_b32 v{48+n}, v105, v104, s[50:51]
        """)
    p(f"""
    v_mov_b32 v96, 0x3f803f80
    v_mov_b32 v97, 0x3f803f80
    v_mov_b32 v98, 0x3f803f80
    v_mov_b32 v99, 0x3f803f80
    v_mfma_f32_32x32x16_bf16 v[64:79], v[48:51], v[48:51], 0
    v_mfma_f32_32x32x16_bf16 v[80:95], v[48:51], v[96:99], 0
    v_mfma_f32_32x32x16_bf16 v[64:79], v[52:55], v[52:55], v[64:79]
    v_mfma_f32_32x32x16_bf16 v[80:95], v[52:55], v[96:99], v[80:95]
    """)
    for s in range(8):
        p(f"v_cndmask_b32 v{100+s}, v{72+s}, v{88+s}, s[50:51]")
    p(f"""
    s_lshl_b32 s29, s16, 11
    v_add_u32 v96, s29, v7
    ds_write_b128 v96, v[100:103] offset:{2*SLOT}
    ds_write_b128 v96, v[104:107] offset:{2*SLOT+1024}
    s_waitcnt lgkmcnt(0)
    s_barrier
    s_lshl_b32 s29, s16, 8
    v_lshlrev_b32 v96, 2, v2
    v_add_u32 v96, s29, v96
    """)
    for w in range(8):
        p(f"ds_read_b32 v{100+w}, v96 offset:{2*SLOT + 2048*w}")
    p(f"""
    s_lshl_b32 s30, s14, 11
    s_add_u32 s30, s30, s29
    s_add_u32 s30, s30, {WS_ACC}
    v_lshlrev_b32 v97, 2, v2
    s_waitcnt lgkmcnt(0)
    v_add_f32 v100, v100, v101
    v_add_f32 v102, v102, v103
    v_add_f32 v104, v104, v105
    v_add_f32 v106, v106, v107
    v_add_f32 v100, v100, v102
    v_add_f32 v104, v104, v106
    v_add_f32 v100, v100, v104
    buffer_atomic_add_f32 v100, v97, s[20:23], s30 offen
    """)
    stamp(p, 6)
    rstamp(p, 8)
    stamp_flush(p, 9, 's[20:23]', 's16', 1)
    p.raw('L_k1_end:')
    p('s_endpgm')
    n = p.hazard_pass()
    return p.text(), KD.format(name='k1_kernel', vgpr=256, sgpr=100, acc=128)


def gen_kr():
    p = Prog()
    p.raw('kr_kernel:')
    p(f"""
    s_cmp_ge_u32 s2, 32
    s_cbranch_scc1 L_kr_end
    s_load_dwordx2 s[4:5], s[0:1], 72
    v_lshrrev_b32 v1, 7, v0
    v_lshlrev_b32 v1, 10, v1
    v_bfe_u32 v2, v0, 1, 6
    v_lshlrev_b32 v2, 4, v2
    v_and_b32 v3, 1, v0
    v_lshlrev_b32 v3, 3, v3
    v_add3_u32 v1, v1, v2, v3
    s_waitcnt lgkmcnt(0)
    s_mov_b32 s8, s4
    s_mov_b32 s9, s5
    s_mov_b32 s10, {WS_SIZE}
    s_mov_b32 s11, 0x00020000
    s_lshl_b32 s12, s2, 11
    s_add_u32 s12, s12, {WS_KVP}
    """)
    for rt in range(64):
        if rt == 48:
            p("s_waitcnt vmcnt(16)")
        p(f"""
        buffer_load_dwordx2 v[{8+2*rt}:{9+2*rt}], v1, s[8:11], s12 offen
        s_add_u32 s12, s12, 65536
        """)
    p("s_waitcnt vmcnt(0)")
    p("v_mov_b32 v4, v8\nv_mov_b32 v5, v9")
    for rt in range(1, 64):
        p(f"v_pk_add_f32 v[4:5], v[4:5], v[{8+2*rt}:{9+2*rt}]")
    p(f"""
    v_cvt_pk_bf16_f32 v6, v4, v5
    v_lshrrev_b32 v1, 7, v0
    v_lshlrev_b32 v1, 3, v1
    v_bfe_u32 v2, v0, 1, 6
    v_lshlrev_b32 v2, 4, v2
    v_and_b32 v3, 1, v0
    v_lshlrev_b32 v3, 2, v3
    v_add3_u32 v1, v1, v2, v3
    s_lshl_b32 s12, s2, 10
    s_add_u32 s12, s12, {WS_KVZ}
    buffer_store_dword v6, v1, s[8:11], s12 offen
    """)
    p.raw('L_kr_end:')
    p('s_endpgm')
    p.hazard_pass()
    return p.text(), KD.format(name='kr_kernel', vgpr=144, sgpr=24, acc=144)


K2_D = 8
K2_NS = K2_D + 2
K2_RING = K2_D + 1
K2_LDS = 12 * 2 * 4096
assert 4 * K2_NS * 2048 <= K2_LDS


def gen_k2():
    p = Prog()
    p.raw('k2_kernel:')
    p(f"""
    s_cmp_ge_u32 s2, 256
    s_cbranch_scc1 L_k2_end
    s_load_dwordx2 s[4:5], s[0:1], 0
    s_load_dwordx2 s[6:7], s[0:1], 16
    s_load_dwordx2 s[8:9], s[0:1], 48
    s_load_dwordx2 s[10:11], s[0:1], 56
    s_load_dwordx2 s[12:13], s[0:1], 72
    v_lshrrev_b32 v1, 6, v0
    v_and_b32 v2, 63, v0
    s_and_b32 s14, s2, 7
    s_lshr_b32 s15, s2, 3
    s_lshl_b32 s16, s14, 2
    s_and_b32 s17, s15, 3
    s_add_u32 s16, s16, s17
    s_lshr_b32 s17, s15, 2
    v_readfirstlane_b32 s18, v1
    s_mov_b32 s44, 1.0
    s_mov_b32 s45, 1.0
    s_mov_b32 s46, {f32bits(-LOG2E)}
    s_mov_b32 s47, {f32bits(-LOG2E)}
    s_waitcnt lgkmcnt(0)
    """)
    p(f"""
    s_mov_b32 s20, s12
    s_mov_b32 s21, s13
    s_mov_b32 s22, {WS_SIZE}
    s_mov_b32 s23, 0x00020000
    s_mov_b32 s24, s8
    s_mov_b32 s25, s9
    s_mov_b32 s26, 1835008
    s_mov_b32 s27, 0x00020000
    s_mov_b32 s28, s6
    s_mov_b32 s29, s7
    s_mov_b32 s30, 524288
    s_mov_b32 s31, 0x00020000
    s_mov_b32 s32, s4
    s_mov_b32 s33, s5
    s_mov_b32 s34, 2097152
    s_mov_b32 s35, 0x00020000
    s_mov_b32 s36, s10
    s_mov_b32 s37, s11
    s_mov_b32 s38, 2097152
    s_mov_b32 s39, 0x00020000
    """)
    p(f"""
    v_lshrrev_b32 v3, 3, v2
    v_lshlrev_b32 v3, 10, v3
    v_bfe_u32 v4, v2, 1, 2
    v_bfe_u32 v5, v2, 4, 1
    v_lshlrev_b32 v5, 1, v5
    v_xor_b32 v4, v4, v5
    v_lshlrev_b32 v4, 5, v4
    v_and_b32 v5, 1, v2
    v_lshlrev_b32 v5, 4, v5
    v_add3_u32 v3, v3, v4, v5
    s_lshl_b32 s19, s17, 7
    v_add_u32 v3, s19, v3
    """)
    p(f"""
    v_lshrrev_b32 v8, 5, v2
    v_lshlrev_b32 v8, 2, v8
    v_bfe_u32 v9, v2, 2, 2
    v_add_u32 v8, v8, v9
    v_lshlrev_b32 v8, 7, v8
    v_and_b32 v9, 3, v2
    v_lshlrev_b32 v9, 3, v9
    v_add_u32 v8, v8, v9
    s_mul_i32 s19, s18, {K2_NS*2048}
    v_add_u32 v8, s19, v8
    v_bfe_u32 v9, v2, 4, 1
    v_bfe_u32 v10, v2, 3, 1
    v_lshlrev_b32 v10, 1, v10
    """)
    for ct in range(2):
        p(f"""
        v_add_u32 v11, {2*ct}, v9
        v_xor_b32 v11, v11, v10
        v_lshlrev_b32 v11, 5, v11
        v_add_u32 v{4+ct}, v8, v11
        """)
    p(f"""
    v_lshlrev_b32 v6, 4, v2
    s_lshr_b32 s40, s18, 1
    s_lshl_b32 s41, s16, 1
    s_add_u32 s40, s40, s41
    s_lshl_b32 s40, s40, 5
    v_and_b32 v7, 31, v2
    v_add_u32 v7, s40, v7
    v_lshlrev_b32 v7, 10, v7
    v_lshrrev_b32 v8, 5, v2
    v_lshlrev_b32 v8, 3, v8
    v_add_u32 v7, v7, v8
    s_lshl_b32 s40, s17, 7
    s_and_b32 s41, s18, 1
    s_lshl_b32 s41, s41, 6
    s_add_u32 s40, s40, s41
    v_add_u32 v7, s40, v7
    """)
    vm = []

    def vmem(text, tag):
        p(text)
        vm.append(tag)

    def wait_tag(tag):
        idx = max(i for i, t in enumerate(vm) if t == tag)
        p(f"s_waitcnt vmcnt({len(vm) - 1 - idx})")

    p(f"""
    s_lshl_b32 s48, s16, 1
    s_mul_i32 s48, s48, 112
    s_mul_i32 s49, s18, 28
    s_add_u32 s48, s48, s49
    s_lshl_b32 s48, s48, 10
    s_add_u32 s48, s48, {WS_H}
    s_mul_i32 s50, s18, {28*16384}
    s_mul_i32 s51, s18, {K2_NS*2048}
    s_lshl_b32 s52, s16, 1
    s_lshl_b32 s52, s52, 5
    s_lshl_b32 s53, s18, 3
    s_add_u32 s52, s52, s53
    s_lshl_b32 s52, s52, 10
    s_add_u32 s52, s52, {WS_PQ}
    s_lshl_b32 s54, s18, 14
    s_add_u32 s54, s54, {WS_ACC}
    s_lshl_b32 s55, s18, 17
    """)
    for hd in range(8):
        for q in range(2):
            vmem(f"buffer_load_dwordx4 v[{128+8*hd+4*q}:{131+8*hd+4*q}], v6, s[20:23], s54 offen offset:{1024*q}", 'kvz')
        p("s_add_u32 s54, s54, 2048")
    for q in range(4):
        vmem(f"buffer_load_dwordx2 v[{8+2*q}:{9+2*q}], v7, s[32:35], 0 offen offset:{16*q}", 'x')

    steps = [('h', i) for i in range(28)] + [('o', i) for i in range(8)]
    NST = len(steps)
    FR = [8 * i for i in range(K2_RING)]
    BF = [16, 24]
    ACCF = [64 + 16 * i for i in range(4)]
    ACCS = [128 + 16 * i for i in range(4)]
    KVZ = 192
    OFR = 224

    def issue(n):
        kind, i = steps[n]
        fr = FR[n % K2_RING]
        st = n % K2_NS
        if kind == 'h':
            a_base, a_step, srd, wbase = 's48', 112 * 1024, 's[24:27]', 's50'
        else:
            a_base, a_step, srd, wbase = 's52', 32 * 1024, 's[28:31]', 's55'
        p(f"s_add_u32 s41, {a_base}, {1024*i}")
        vmem(f"buffer_load_dwordx4 a[{fr}:{fr+3}], v6, s[20:23], s41 offen", n)
        p(f"s_add_u32 s41, s41, {a_step}")
        vmem(f"buffer_load_dwordx4 a[{fr+4}:{fr+7}], v6, s[20:23], s41 offen", n)
        p(f"""
        s_add_u32 m0, s51, {st*2048}
        s_add_u32 s41, {wbase}, {16384*i}
        """)
        vmem(f"buffer_load_dwordx4 v3, {srd}, s41 offen lds", n)
        p(f"""
        s_add_u32 m0, s51, {st*2048+1024}
        s_add_u32 s41, s41, 8192
        """)
        vmem(f"buffer_load_dwordx4 v3, {srd}, s41 offen lds", n)

    def breads(n):
        st = n % K2_NS
        bf = BF[n & 1]
        for ct in range(2):
            for ri in range(2):
                p(f"ds_read_b64_tr_b16 v[{bf+4*ct+2*ri}:{bf+4*ct+2*ri+1}], v{4+ct} offset:{st*2048 + ri*1024}")

    first_mfma = {}

    def mf(acc, a, b, key):
        srcc = '0' if key not in first_mfma else f'v[{acc}:{acc+15}]'
        first_mfma[key] = True
        p(f"v_mfma_f32_32x32x16_bf16 v[{acc}:{acc+15}], {a}, {b}, {srcc}")

    stamp(p, 0)
    for n in range(min(K2_D, NST)):
        issue(n)
    wait_tag('kvz')
    for hd in range(8):
        for j in range(4):
            p(f"v_cvt_pk_bf16_f32 v{KVZ+4*hd+j}, v{128+8*hd+2*j}, v{129+8*hd+2*j}")
    wait_tag(0)
    stamp(p, 1)
    breads(0)
    for n in range(NST):
        kind, i = steps[n]
        if n + K2_D < NST:
            issue(n + K2_D)
        if n + 1 < NST:
            wait_tag(n + 1)
            breads(n + 1)
            p("s_waitcnt lgkmcnt(4)")
        else:
            p("s_waitcnt lgkmcnt(0)")
        fr = FR[n % K2_RING]
        bf = BF[n & 1]
        if kind == 'h':
            for rt in range(2):
                for ct in range(2):
                    mf(ACCF[2*rt+ct], f"v[{bf+4*ct}:{bf+4*ct+3}]", f"a[{fr+4*rt}:{fr+4*rt+3}]", ('f', 2*rt+ct))
        else:
            for rt in range(2):
                D = 32 + 16 * rt
                p(f"v_mfma_f32_32x32x16_bf16 v[{D}:{D+15}], v[{KVZ+4*i}:{KVZ+4*i+3}], a[{fr+4*rt}:{fr+4*rt+3}], 0")
            for rt in range(2):
                D = 32 + 16 * rt
                p(f"""
                v_cvt_pk_bf16_f32 v{D+9}, v{D+8}, v{D+8}
                v_lshlrev_b32 v{D+9}, 16, v{D+9}
                v_add_f32 v{D+9}, {f32bits(1e-6)}, v{D+9}
                v_cvt_pk_bf16_f32 v{D+9}, v{D+9}, v{D+9}
                v_lshlrev_b32 v{D+9}, 16, v{D+9}
                v_rcp_f32 v{D+10}, v{D+9}
                v_fma_f32 v{D+11}, -v{D+9}, v{D+10}, 1.0
                v_fma_f32 v{D+10}, v{D+11}, v{D+10}, v{D+10}
                """)
                for j in range(4):
                    p(f"""
                    v_cvt_pk_bf16_f32 v{D+12}, v{D+2*j}, v{D+2*j+1}
                    v_lshlrev_b32 v{D+13}, 16, v{D+12}
                    v_and_b32 v{D+14}, 0xffff0000, v{D+12}
                    v_mul_f32 v{D+13}, v{D+13}, v{D+10}
                    v_mul_f32 v{D+14}, v{D+14}, v{D+10}
                    v_cvt_pk_bf16_f32 v{OFR+4*rt+j}, v{D+13}, v{D+14}
                    """)
            for rt in range(2):
                for ct in range(2):
                    mf(ACCS[2*rt+ct], f"v[{bf+4*ct}:{bf+4*ct+3}]", f"v[{OFR+4*rt}:{OFR+4*rt+3}]", ('s', 2*rt+ct))

    stamp(p, 2)
    p("s_nop 7\ns_nop 4\ns_barrier")
    p(f"v_mov_b32 v20, v6")
    for w in range(4):
        lab = f'L_k2_w{w}'
        p(f"s_cmp_lg_u32 s18, {w}\ns_cbranch_scc1 {lab}_skip")
        for qd in range(4):
            if qd == w:
                continue
            slot = w if w < qd else w - 1
            p(f"v_add_u32 v21, {qd * 24576}, v20")
            for kind, accs in enumerate((ACCF, ACCS)):
                blk = (slot * 2 + kind) * 4096
                for q in range(4):
                    p(f"ds_write_b128 v21, v[{accs[qd]+4*q}:{accs[qd]+4*q+3}] offset:{blk + q*1024}")
        p.raw(f'{lab}_skip:')
    p("""
    s_waitcnt lgkmcnt(0)
    s_barrier
    """)
    for w in range(4):
        lab = f'L_k2_r{w}'
        p(f"s_cmp_lg_u32 s18, {w}\ns_cbranch_scc1 {lab}_skip")
        for kind, accs in enumerate((ACCF, ACCS)):
            for r in range(16):
                p(f"v_mov_b32 v{32 + 16*kind + r}, v{accs[w] + r}")
        p(f"v_add_u32 v21, {w * 24576}, v20")
        for kind in range(2):
            for slot in range(3):
                blk = (slot * 2 + kind) * 4096
                for q in range(4):
                    d = 160 + (kind * 3 + slot) * 16 + 4 * q
                    p(f"ds_read_b128 v[{d}:{d+3}], v21 offset:{blk + q*1024}")
        p.raw(f'{lab}_skip:')
    p("s_waitcnt lgkmcnt(0)")
    for kind in range(2):
        for slot in range(3):
            for r2 in range(8):
                a = 32 + 16 * kind + 2 * r2
                b = 160 + (kind * 3 + slot) * 16 + 2 * r2
                p(f"v_pk_add_f32 v[{a}:{a+1}], v[{a}:{a+1}], v[{b}:{b+1}]")
    stamp(p, 3)
    p("s_waitcnt vmcnt(0)")
    for q in range(4):
        for h2 in range(2):
            f0, f1 = 32 + 4 * q + 2 * h2, 33 + 4 * q + 2 * h2
            s0, s1 = 48 + 4 * q + 2 * h2, 49 + 4 * q + 2 * h2
            xv = 8 + 2 * q + h2
            p(f"""
            v_cvt_pk_bf16_f32 v20, v{f0}, v{f1}
            v_lshlrev_b32 v22, 16, v20
            v_and_b32 v23, 0xffff0000, v20
            v_pk_mul_f32 v[24:25], v[22:23], s[46:47]
            v_exp_f32 v24, v24
            v_exp_f32 v25, v25
            v_pk_add_f32 v[24:25], v[24:25], s[44:45]
            v_rcp_f32 v24, v24
            v_rcp_f32 v25, v25
            v_pk_mul_f32 v[24:25], v[24:25], v[22:23]
            v_cvt_pk_bf16_f32 v20, v24, v25
            v_lshlrev_b32 v24, 16, v20
            v_and_b32 v25, 0xffff0000, v20
            v_cvt_pk_bf16_f32 v20, v{s0}, v{s1}
            v_lshlrev_b32 v22, 16, v20
            v_and_b32 v23, 0xffff0000, v20
            v_pk_mul_f32 v[24:25], v[24:25], v[22:23]
            v_cvt_pk_bf16_f32 v20, v24, v25
            v_lshlrev_b32 v24, 16, v20
            v_and_b32 v25, 0xffff0000, v20
            v_lshlrev_b32 v22, 16, v{xv}
            v_and_b32 v23, 0xffff0000, v{xv}
            v_pk_add_f32 v[24:25], v[24:25], v[22:23]
            v_cvt_pk_bf16_f32 v{26+h2}, v24, v25
            """)
        p(f"buffer_store_dwordx2 v[26:27], v7, s[36:39], 0 offen offset:{16*q}")
    stamp(p, 4)
    stamp_flush(p, 5, 's[20:23]', 's18', 3)
    p.raw('L_k2_end:')
    p('s_endpgm')
    p.hazard_pass()
    return p.text(), KD.format(name='k2_kernel', vgpr=256 + 8 * K2_RING, sgpr=100, acc=256)


def build(kernels, launches):
    hdr = open('cdna_kernels/' + NAME + '.s.ref').read().split('; Override launch geometry')[0]
    out = hdr
    for l in launches:
        out += l + '\n'
    out += '.amdgcn_target "amdgcn-amd-amdhsa--gfx950"\n.text\n'
    for name, (code, kd) in kernels.items():
        out += f'.globl {name}\n.p2align 8\n.type {name},@function\n' + code
    out += '.section .rodata,"a"\n'
    for name, (code, kd) in kernels.items():
        out += '.p2align 6\n' + kd
    return out


if __name__ == '__main__':
    kernels = {}
    launches = []
    kernels['ln_kernel'] = gen_ln()
    launches.append('; @launch kernel=ln_kernel grid=(512,1,1) block=(256,1,1) lds=0')
    kernels['k1_kernel'] = gen_k1()
    launches.append(f'; @launch kernel=k1_kernel grid=(256,1,1) block=(512,1,1) lds={K1_LDS}')
    kernels['k2_kernel'] = gen_k2()
    launches.append(f'; @launch kernel=k2_kernel grid=(256,1,1) block=(256,1,1) lds={K2_LDS}')
    txt = build(kernels, launches)
    open('cdna_kernels/' + NAME + '.s', 'w').write(txt)
    print('written', len(txt), 'bytes')
```

```python
import sys
sys.path.insert(0, 'dev')
from asmdsl import Prog

NAME = 'recurrent_scan__linear_attn_block__geglu_ffn__prompt'

WS_XN = 0
WS_H = 2 * 1024 * 1024
WS_PQ = WS_H + 64 * 112 * 1024
WS_ACC = WS_PQ + 64 * 32 * 1024
WS_KVZ = WS_ACC + 32 * 2048
WS_SIZE = 268435456

KD = '''.amdhsa_kernel {name}
  .amdhsa_next_free_vgpr {vgpr}
  .amdhsa_next_free_sgpr {sgpr}
  .amdhsa_accum_offset {acc}
  .amdhsa_group_segment_fixed_size 0
  .amdhsa_kernarg_size 80
  .amdhsa_user_sgpr_count 2
  .amdhsa_user_sgpr_kernarg_segment_ptr 1
  .amdhsa_system_sgpr_workgroup_id_x 1
.end_amdhsa_kernel
'''


def f32bits(x):
    import struct
    return '0x%08x' % struct.unpack('<I', struct.pack('<f', x))[0]


STAMPS = '--stamps' in sys.argv
ST_FLAG = ' sc1' if '--sc1' in sys.argv else (' nt' if '--nt' in sys.argv else '')
WS_DBG = WS_KVZ + 65536
STAMP_S0 = 80


def stamp(p, idx):
    if not STAMPS:
        return
    p(f"""
    s_memtime s[78:79]
    s_waitcnt lgkmcnt(0)
    s_mov_b32 s{STAMP_S0+idx}, s78
    """)


def rstamp(p, idx):
    if not STAMPS:
        return
    p(f"""
    s_memrealtime s[78:79]
    s_waitcnt lgkmcnt(0)
    s_mov_b32 s{STAMP_S0+idx}, s78
    """)


def stamp_flush(p, nst, srd, swave, kid):
    if not STAMPS:
        return
    p(f"""
    s_lshl_b32 s76, s2, 3
    s_add_u32 s76, s76, {swave}
    s_lshl_b32 s76, s76, 6
    s_add_u32 s76, s76, {WS_DBG + kid * 256 * 8 * 64}
    v_mov_b32 v0, 0
    """)
    for i in range(nst):
        p(f"""
        v_mov_b32 v1, s{STAMP_S0+i}
        buffer_store_dword v1, v0, {srd}, s76 offen offset:{4*i}
        """)


def allreduce_sum(p, v, t, sbase):
    p(f'''
    v_add_f32_dpp {t}, {v}, {v} quad_perm:[1,0,3,2] row_mask:0xf bank_mask:0xf
    v_add_f32_dpp {v}, {t}, {t} quad_perm:[2,3,0,1] row_mask:0xf bank_mask:0xf
    v_add_f32_dpp {t}, {v}, {v} row_ror:4 row_mask:0xf bank_mask:0xf
    v_add_f32_dpp {v}, {t}, {t} row_ror:8 row_mask:0xf bank_mask:0xf
    v_readlane_b32 s{sbase}, {v}, 0
    v_readlane_b32 s{sbase+1}, {v}, 16
    v_readlane_b32 s{sbase+2}, {v}, 32
    v_readlane_b32 s{sbase+3}, {v}, 48
    v_mov_b32 {v}, s{sbase}
    v_add_f32 {v}, s{sbase+1}, {v}
    v_add_f32 {v}, s{sbase+2}, {v}
    v_add_f32 {v}, s{sbase+3}, {v}
    ''')


def rb(p, dst, src, tmp):
    p(f'''
    v_cvt_pk_bf16_f32 {tmp}, {src}, {src}
    v_lshlrev_b32 {dst}, 16, {tmp}
    ''')


LN_PREF = 48 + 16 + 56 + 56 + 56


def gen_ln():
    p = Prog()
    p.raw('ln_kernel:')
    p(f'''
    s_cmp_ge_u32 s2, 512
    s_cbranch_scc1 L_ln_pref
    s_load_dwordx2 s[4:5], s[0:1], 0
    s_load_dwordx2 s[6:7], s[0:1], 72
    v_and_b32 v1, 63, v0
    v_lshrrev_b32 v2, 6, v0
    s_lshl_b32 s3, s2, 2
    v_add_u32 v2, s3, v2
    v_lshlrev_b32 v3, 10, v2
    v_lshlrev_b32 v4, 4, v1
    v_add_u32 v3, v3, v4
    s_waitcnt lgkmcnt(0)
    s_mov_b32 s8, s4
    s_mov_b32 s9, s5
    s_mov_b32 s10, 2097152
    s_mov_b32 s11, 0x00020000
    s_mov_b32 s12, s6
    s_mov_b32 s13, s7
    s_mov_b32 s14, {WS_SIZE}
    s_mov_b32 s15, 0x00020000
    buffer_load_dwordx4 v[8:11], v3, s[8:11], 0 offen
    s_cmp_ge_u32 s2, 64
    s_cbranch_scc1 L_ln_nozero
    v_lshlrev_b32 v5, 2, v0
    s_lshl_b32 s3, s2, 10
    s_add_u32 s3, s3, {WS_ACC}
    v_mov_b32 v6, 0
    buffer_store_dword v6, v5, s[12:15], s3 offen
    ''')
    p.raw('L_ln_nozero:')
    p(f'''
    v_lshrrev_b32 v5, 5, v2
    v_lshlrev_b32 v5, 5, v5
    v_lshrrev_b32 v6, 1, v1
    v_add_u32 v5, v5, v6
    v_lshlrev_b32 v5, 10, v5
    v_and_b32 v6, 1, v1
    v_lshlrev_b32 v6, 5, v6
    v_and_b32 v7, 31, v2
    v_add_u32 v6, v6, v7
    v_lshlrev_b32 v6, 4, v6
    v_add_u32 v5, v5, v6
    s_waitcnt vmcnt(0)
    ''')
    for j in range(4):
        p(f'''
        v_lshlrev_b32 v{16+2*j}, 16, v{8+j}
        v_and_b32 v{17+2*j}, 0xffff0000, v{8+j}
        ''')
    p('''
    v_add_f32 v24, v16, v17
    v_add_f32 v25, v18, v19
    v_add_f32 v26, v20, v21
    v_add_f32 v27, v22, v23
    v_add_f32 v24, v24, v25
    v_add_f32 v26, v26, v27
    v_add_f32 v24, v24, v26
    ''')
    allreduce_sum(p, 'v24', 'v25', 16)
    p('v_mul_f32 v24, 0x3b000000, v24')
    p('v_mov_b32 v26, 0')
    for j in range(8):
        p(f'''
        v_sub_f32 v27, v{16+j}, v24
        v_fmac_f32 v26, v27, v27
        ''')
    allreduce_sum(p, 'v26', 'v25', 16)
    p('v_mul_f32 v26, 0x3b000000, v26')
    rb(p, 'v28', 'v24', 'v25')
    rb(p, 'v29', 'v26', 'v25')
    p(f'v_add_f32 v29, {f32bits(1e-5)}, v29')
    rb(p, 'v29', 'v29', 'v25')
    p('v_sqrt_f32 v29, v29')
    rb(p, 'v29', 'v29', 'v25')
    p('''
    v_rcp_f32 v30, v29
    v_fma_f32 v31, -v29, v30, 1.0
    v_fma_f32 v30, v31, v30, v30
    ''')
    for j in range(4):
        a, b = 16 + 2 * j, 17 + 2 * j
        p(f'''
        v_sub_f32 v{a}, v{a}, v28
        v_sub_f32 v{b}, v{b}, v28
        v_cvt_pk_bf16_f32 v32, v{a}, v{b}
        v_lshlrev_b32 v{a}, 16, v32
        v_and_b32 v{b}, 0xffff0000, v32
        v_mul_f32 v33, v{a}, v30
        v_mul_f32 v34, v{b}, v30
        v_fma_f32 v35, -v33, v29, v{a}
        v_fma_f32 v36, -v34, v29, v{b}
        v_fma_f32 v33, v35, v30, v33
        v_fma_f32 v34, v36, v30, v34
        v_cvt_pk_bf16_f32 v{12+j}, v33, v34
        ''')
    p(f'''
    buffer_store_dwordx4 v[12:15], v5, s[12:15], 0 offen
    ''')
    p('s_endpgm')
    p.raw('L_ln_pref:')
    p(f'''
    s_sub_u32 s3, s2, 512
    s_cmp_ge_u32 s3, {LN_PREF}
    s_cbranch_scc1 L_ln_end
    s_load_dwordx2 s[4:5], s[0:1], 8
    s_load_dwordx2 s[6:7], s[0:1], 16
    s_load_dwordx2 s[8:9], s[0:1], 32
    s_load_dwordx2 s[10:11], s[0:1], 40
    s_load_dwordx2 s[12:13], s[0:1], 48
    v_lshlrev_b32 v1, 4, v0
    s_waitcnt lgkmcnt(0)
    s_mov_b32 s16, s4
    s_mov_b32 s17, s5
    s_mov_b32 s18, 1572864
    s_cmp_lt_u32 s3, 48
    s_cbranch_scc1 L_ln_pf_go
    s_sub_u32 s3, s3, 48
    s_mov_b32 s16, s6
    s_mov_b32 s17, s7
    s_mov_b32 s18, 524288
    s_cmp_lt_u32 s3, 16
    s_cbranch_scc1 L_ln_pf_go
    s_sub_u32 s3, s3, 16
    s_mov_b32 s16, s8
    s_mov_b32 s17, s9
    s_mov_b32 s18, 1835008
    s_cmp_lt_u32 s3, 56
    s_cbranch_scc1 L_ln_pf_go
    s_sub_u32 s3, s3, 56
    s_mov_b32 s16, s10
    s_mov_b32 s17, s11
    s_cmp_lt_u32 s3, 56
    s_cbranch_scc1 L_ln_pf_go
    s_sub_u32 s3, s3, 56
    s_mov_b32 s16, s12
    s_mov_b32 s17, s13
    ''')
    p.raw('L_ln_pf_go:')
    p('''
    s_mov_b32 s19, 0x00020000
    s_lshl_b32 s3, s3, 15
    ''')
    for j in range(8):
        p(f'''
        buffer_load_dwordx4 v[{8+4*j}:{11+4*j}], v1, s[16:19], s3 offen
        s_add_u32 s3, s3, 4096
        ''')
    p('s_waitcnt vmcnt(0)')
    p.raw('L_ln_end:')
    p('s_endpgm')
    n = p.hazard_pass()
    return p.text(), KD.format(name='ln_kernel', vgpr=40, sgpr=24, acc=40)


SLOT = 16512
RREG = 8256
K1_LDS = 8 * SLOT
C1 = -2.0 * 1.4426950408889634 * 0.7978845608028654
C2 = C1 * 0.044715
LOG2E = 1.4426950408889634


def k1_unpack(p, x0, x1, src):
    p(f"""
    v_lshlrev_b32 {x0}, 16, {src}
    v_and_b32 {x1}, 0xffff0000, {src}
    """)


def gen_k1():
    p = Prog()
    p.raw('k1_kernel:')
    p(f"""
    s_cmp_ge_u32 s2, 256
    s_cbranch_scc1 L_k1_end
    s_load_dwordx2 s[4:5], s[0:1], 8
    s_load_dwordx2 s[6:7], s[0:1], 32
    s_load_dwordx2 s[8:9], s[0:1], 40
    s_load_dwordx2 s[10:11], s[0:1], 72
    v_lshrrev_b32 v1, 6, v0
    v_and_b32 v2, 63, v0
    s_and_b32 s12, s2, 7
    s_lshr_b32 s13, s2, 3
    s_lshl_b32 s14, s12, 2
    s_and_b32 s15, s13, 3
    s_add_u32 s14, s14, s15
    s_lshr_b32 s15, s13, 2
    v_readfirstlane_b32 s16, v1
    s_mov_b32 s40, {f32bits(C1)}
    s_mov_b32 s41, {f32bits(C1)}
    s_mov_b32 s42, {f32bits(C2)}
    s_mov_b32 s43, {f32bits(C2)}
    s_mov_b32 s44, 1.0
    s_mov_b32 s45, 1.0
    s_mov_b32 s46, {f32bits(LOG2E)}
    s_mov_b32 s47, {f32bits(LOG2E)}
    s_mov_b32 s48, {f32bits(1e-6)}
    s_mov_b32 s49, {f32bits(1e-6)}
    s_mov_b32 s50, 0xffff0000
    s_mov_b32 s51, 0xffff0000
    s_waitcnt lgkmcnt(0)
    """)
    p(f"""
    s_mov_b32 s20, s10
    s_mov_b32 s21, s11
    s_mov_b32 s22, {WS_SIZE}
    s_mov_b32 s23, 0x00020000
    s_mov_b32 s32, s4
    s_mov_b32 s33, s5
    s_mov_b32 s34, 1572864
    s_mov_b32 s35, 0x00020000
    s_and_b32 s17, s16, 1
    s_lshr_b32 s18, s16, 1
    s_cmp_ge_u32 s14, 28
    s_cbranch_scc1 L_k1_qsrc
    s_cmp_eq_u32 s17, 0
    s_cselect_b32 s24, s6, s8
    s_cselect_b32 s25, s7, s9
    s_lshl_b32 s19, s14, 7
    s_mov_b32 s28, 3584
    s_mov_b32 s29, 1835008
    s_branch L_k1_srcdone
    """)
    p.raw('L_k1_qsrc:')
    p(f"""
    s_mov_b32 s24, s4
    s_mov_b32 s25, s5
    s_sub_u32 s19, s14, 28
    s_lshl_b32 s19, s19, 8
    s_lshl_b32 s30, s17, 7
    s_add_u32 s19, s19, s30
    s_mov_b32 s28, 3072
    s_mov_b32 s29, 1572864
    """)
    p.raw('L_k1_srcdone:')
    p(f"""
    s_add_u32 s24, s24, s19
    s_addc_u32 s25, s25, 0
    s_sub_u32 s26, s29, s19
    s_mov_b32 s27, 0x00020000
    """)
    p(f"""
    v_lshrrev_b32 v3, 3, v2
    v_mul_lo_u32 v3, v3, s28
    v_bfe_u32 v4, v2, 1, 2
    v_bfe_u32 v5, v2, 4, 1
    v_xor_b32 v4, v4, v5
    v_lshlrev_b32 v4, 5, v4
    v_and_b32 v5, 1, v2
    v_lshlrev_b32 v5, 4, v5
    v_add3_u32 v3, v3, v4, v5
    """)
    p(f"""
    v_lshrrev_b32 v4, 2, v2
    v_mul_u32_u24 v4, 3072, v4
    v_bfe_u32 v5, v2, 1, 1
    v_lshlrev_b32 v5, 10, v5
    v_sub_u32 v5, 2048, v5
    v_add_u32 v4, v4, v5
    v_and_b32 v5, 1, v2
    v_lshlrev_b32 v5, 4, v5
    s_lshl_b32 s30, s14, 5
    v_add3_u32 v4, v4, v5, s30
    """)
    p(f"""
    v_bfe_u32 v5, v2, 4, 1
    v_mul_u32_u24 v5, {RREG}, v5
    v_lshrrev_b32 v6, 5, v2
    v_lshlrev_b32 v6, 3, v6
    v_bfe_u32 v7, v2, 2, 2
    v_add_u32 v6, v6, v7
    v_lshlrev_b32 v6, 7, v6
    v_add_u32 v5, v5, v6
    v_and_b32 v6, 3, v2
    v_lshlrev_b32 v6, 3, v6
    v_add_u32 v5, v5, v6
    v_bfe_u32 v7, v2, 3, 1
    """)
    for t in range(4):
        p(f"""
        v_xor_b32 v6, {t}, v7
        v_lshlrev_b32 v6, 5, v6
        v_add_u32 v{8+t}, v5, v6
        v_add_u32 v{12+t}, {4*SLOT}, v{8+t}
        """)
    p(f"""
    v_lshrrev_b32 v6, 5, v2
    v_lshlrev_b32 v6, 3, v6
    v_bfe_u32 v7, v2, 2, 2
    v_add_u32 v6, v6, v7
    v_lshlrev_b32 v6, 6, v6
    v_bfe_u32 v7, v2, 4, 1
    v_lshlrev_b32 v7, 5, v7
    v_add_u32 v6, v6, v7
    v_and_b32 v7, 3, v2
    v_lshlrev_b32 v7, 3, v7
    v_add_u32 v6, v6, v7
    v_lshlrev_b32 v7, 4, v2
    """)
    p(f"""
    s_lshl_b32 s31, s15, 3
    s_add_u32 s31, s31, s16
    s_lshl_b32 s36, s31, 15
    s_mul_i32 s37, s17, {RREG}
    s_lshl_b32 s30, s18, 11
    s_add_u32 s37, s37, s30
    s_lshl_b32 s30, s18, 4
    s_mul_i32 s38, s30, s28
    s_lshl_b32 s39, s28, 3
    """)
    for c in range(8):
        p(f"""
        s_add_u32 m0, s37, {c*SLOT}
        s_mul_i32 s30, s28, {64*c}
        s_add_u32 s30, s30, s38
        buffer_load_dwordx4 v3, s[24:27], s30 offen lds
        s_add_u32 m0, s37, {c*SLOT + 1024}
        s_add_u32 s30, s30, s39
        buffer_load_dwordx4 v3, s[24:27], s30 offen lds
        """)
        p(f"s_add_u32 s30, s36, {c*4096}")
        for j in range(4):
            p(f"buffer_load_dwordx4 a[{16*c+4*j}:{16*c+4*j+3}], v7, s[20:23], s30 offen offset:{1024*j}")

    stamp(p, 0)
    rstamp(p, 7)
    F = [16, 20, 24, 28]
    ACC = [32, 48, 64, 80]

    def blk_reads(t, c, kk):
        base = f'v{8+t}' if c < 4 else f'v{12+t}'
        off = (c % 4) * SLOT + 2048 * kk
        p(f"""
        ds_read_b64_tr_b16 v[{F[t]}:{F[t]+1}], {base} offset:{off}
        ds_read_b64_tr_b16 v[{F[t]+2}:{F[t]+3}], {base} offset:{off+512}
        """)

    def seq_reads(m, tiles):
        c, kk, tt = m >> 3, (m >> 1) & 3, m & 1
        t = tiles[tt]
        fs = m & 3
        base = f'v{8+t}' if c < 4 else f'v{12+t}'
        off = (c % 4) * SLOT + 2048 * kk
        p(f"""
        ds_read_b64_tr_b16 v[{F[fs]}:{F[fs]+1}], {base} offset:{off}
        ds_read_b64_tr_b16 v[{F[fs]+2}:{F[fs]+3}], {base} offset:{off+512}
        """)

    def block_pass(tiles, stream, first):
        per = (len(stream) + 63) // 64 if stream else 0
        pos = 0
        for m in range(64):
            c, kk, tt = m >> 3, (m >> 1) & 3, m & 1
            if first and (m & 7) == 0:
                done = 6 * (c + 1) + 2 if c < 7 else 48
                p(f"s_waitcnt vmcnt({48 - done})")
                p("s_barrier")
                if c == 0:
                    stamp(p, 1)
            if (not first) and m == 16:
                p("s_barrier")
                for i in range(4):
                    p(f"""
                    s_lshl_b32 s54, s16, 6
                    s_add_u32 s54, s54, {16*i}
                    s_lshl_b32 s55, s54, 6
                    s_cmp_ge_u32 s54, 256
                    s_cselect_b32 s56, {SLOT - 16384}, 0
                    s_add_u32 s55, s55, s56
                    s_mov_b32 m0, s55
                    s_mul_i32 s54, s54, 3072
                    buffer_load_dwordx4 v4, s[32:35], s54 offen lds
                    """)
            if m == 0:
                for mm in range(3):
                    seq_reads(mm, tiles)
            t = tiles[tt]
            K = 4 * c + kk
            p(f"s_waitcnt lgkmcnt({4 if m < 61 else 2*(63-m)})")
            srcc = '0' if K == 0 else f'v[{ACC[t]}:{ACC[t]+15}]'
            p(f"v_mfma_f32_32x32x16_bf16 v[{ACC[t]}:{ACC[t]+15}], v[{F[m&3]}:{F[m&3]+3}], a[{4*K}:{4*K+3}], {srcc}")
            if m + 3 < 64:
                seq_reads(m + 3, tiles)
            for ins in stream[pos:pos + per]:
                p(ins)
            pos += per
        for ins in stream[pos:]:
            p(ins)

    block_pass((0, 1), [], True)
    stamp(p, 2)
    KACC = 112
    UT = [96, 104]
    PS = [8, 12]

    def ffn_unit(tb, g0, g1, u0, u1, dst):
        T0, T1, X, Y, S = tb, tb + 1, tb + 2, tb + 4, tb + 6
        return [
            f"v_cvt_pk_bf16_f32 v{T0}, v{g0}, v{g1}",
            f"v_cvt_pk_bf16_f32 v{T1}, v{u0}, v{u1}",
            f"v_lshlrev_b32 v{X}, 16, v{T0}",
            f"v_and_b32 v{X+1}, 0xffff0000, v{T0}",
            f"v_lshlrev_b32 v{Y}, 16, v{T1}",
            f"v_and_b32 v{Y+1}, 0xffff0000, v{T1}",
            f"v_pk_mul_f32 v[{S}:{S+1}], v[{X}:{X+1}], v[{X}:{X+1}]",
            f"v_pk_mul_f32 v[{S}:{S+1}], v[{S}:{S+1}], s[42:43]",
            f"v_pk_add_f32 v[{S}:{S+1}], v[{S}:{S+1}], s[40:41]",
            f"v_pk_mul_f32 v[{S}:{S+1}], v[{S}:{S+1}], v[{X}:{X+1}]",
            f"v_exp_f32 v{S}, v{S}",
            f"v_exp_f32 v{S+1}, v{S+1}",
            f"v_pk_add_f32 v[{S}:{S+1}], v[{S}:{S+1}], s[44:45]",
            f"v_rcp_f32 v{S}, v{S}",
            f"v_rcp_f32 v{S+1}, v{S+1}",
            f"v_pk_mul_f32 v[{S}:{S+1}], v[{S}:{S+1}], v[{X}:{X+1}]",
            f"v_cvt_pk_bf16_f32 v{T0}, v{S}, v{S+1}",
            f"v_lshlrev_b32 v{S}, 16, v{T0}",
            f"v_and_b32 v{S+1}, 0xffff0000, v{T0}",
            f"v_pk_mul_f32 v[{S}:{S+1}], v[{S}:{S+1}], v[{Y}:{Y+1}]",
            f"v_cvt_pk_bf16_f32 v{dst}, v{S}, v{S+1}",
        ]

    def phi_unit(tb, a0, a1, dst, m):
        T0, X, E, A = tb, tb + 2, tb + 4, tb + 6
        return [
            f"v_cvt_pk_bf16_f32 v{T0}, v{a0}, v{a1}",
            f"v_lshlrev_b32 v{X}, 16, v{T0}",
            f"v_and_b32 v{X+1}, 0xffff0000, v{T0}",
            f"v_pk_mul_f32 v[{E}:{E+1}], v[{X}:{X+1}], s[46:47]",
            f"v_pk_add_f32 v[{A}:{A+1}], v[{X}:{X+1}], s[44:45]",
            f"v_exp_f32 v{E}, v{E}",
            f"v_exp_f32 v{E+1}, v{E+1}",
            f"v_cmp_lt_f32 {m}, 0, v{X}",
            f"v_cndmask_b32 v{E}, v{E}, v{A}, {m}",
            f"v_cmp_lt_f32 {m}, 0, v{X+1}",
            f"v_cndmask_b32 v{E+1}, v{E+1}, v{A+1}, {m}",
            f"v_cvt_pk_bf16_f32 v{T0}, v{E}, v{E+1}",
            f"v_lshlrev_b32 v{E}, 16, v{T0}",
            f"v_and_b32 v{E+1}, 0xffff0000, v{T0}",
            f"v_pk_add_f32 v[{E}:{E+1}], v[{E}:{E+1}], s[48:49]",
            f"v_cvt_pk_bf16_f32 v{dst}, v{E}, v{E+1}",
        ]

    def zip2(a, b):
        out = []
        for i in range(max(len(a), len(b))):
            if i < len(a): out.append(a[i])
            if i < len(b): out.append(b[i])
        return out

    def ffn_stream(tiles, PS):
        st = []
        for t in tiles:
            a = ACC[t]
            P = PS[t & 1]
            for n in range(0, 4, 2):
                ua = ffn_unit(UT[0], a + 2*n, a + 2*n + 1, a + 8 + 2*n, a + 9 + 2*n, P + n)
                ub = ffn_unit(UT[1], a + 2*n + 2, a + 2*n + 3, a + 10 + 2*n, a + 11 + 2*n, P + n + 1)
                st += zip2(ua, ub)
            st.append(f"buffer_store_dwordx4 v[{P}:{P+3}], v7, s[20:23], s30 offen offset:{1024*t}{ST_FLAG}")
        return st

    def q_stream(tiles, PS):
        st = []
        k = 0
        for t in tiles:
            a = ACC[t]
            for hh in range(2):
                P = PS[k & 1]; k += 1
                for n in range(0, 4, 2):
                    ua = phi_unit(UT[0], a + 8*hh + 2*n, a + 8*hh + 2*n + 1, P + n, 'vcc')
                    ub = phi_unit(UT[1], a + 8*hh + 2*n + 2, a + 8*hh + 2*n + 3, P + n + 1, 's[52:53]')
                    st += zip2(ua, ub)
                st.append(f"buffer_store_dwordx4 v[{P}:{P+3}], v7, s[20:23], s{30 - hh} offen offset:{1024*t}{ST_FLAG}")
        return st

    def kv_reads(slot_f, K):
        row0 = 16 * K
        off = (row0 % 256) * 64 + (SLOT if row0 >= 256 else 0)
        p(f"""
        ds_read_b64_tr_b16 v[{F[slot_f]}:{F[slot_f]+1}], v6 offset:{off}
        ds_read_b64_tr_b16 v[{F[slot_f]+2}:{F[slot_f]+3}], v6 offset:{off+256}
        """)

    def kv_phase(stream):
        p("""
        s_waitcnt vmcnt(0)
        s_barrier
        """)
        for K in range(3):
            kv_reads(K, K)
        per = (len(stream) + 31) // 32
        pos = 0
        for K in range(32):
            fs = K & 3
            p(f"s_waitcnt lgkmcnt({2*min(2, 31-K) if K >= 29 else 4})")
            srcc = '0' if K == 0 else f'v[{KACC}:{KACC+15}]'
            p(f"v_mfma_f32_32x32x16_bf16 v[{KACC}:{KACC+15}], a[{4*K}:{4*K+3}], v[{F[fs]}:{F[fs]+3}], {srcc}")
            if K + 3 < 32:
                kv_reads((K + 3) & 3, K + 3)
            for ins in stream[pos:pos + per]:
                p(ins)
            pos += per
        for ins in stream[pos:]:
            p(ins)

    p(f"""
    s_cmp_ge_u32 s14, 28
    s_cbranch_scc1 L_k1_qepi
    s_mul_i32 s30, s31, 112
    s_lshl_b32 s29, s14, 2
    s_add_u32 s30, s30, s29
    s_lshl_b32 s30, s30, 10
    s_add_u32 s30, s30, {WS_H}
    """)
    block_pass((2, 3), ffn_stream((0, 1), [112, 116]), False)
    kv_phase(ffn_stream((2, 3), PS))
    p("s_branch L_k1_kvepi")
    p.raw('L_k1_qepi:')
    p(f"""
    s_lshl_b32 s30, s31, 5
    s_sub_u32 s29, s14, 28
    s_lshl_b32 s29, s29, 3
    s_add_u32 s30, s30, s29
    s_lshl_b32 s30, s30, 10
    s_add_u32 s30, s30, {WS_PQ}
    s_add_u32 s29, s30, 4096
    """)
    block_pass((2, 3), q_stream((0, 1), [112, 116]), False)
    kv_phase(q_stream((2, 3), PS))
    p.raw('L_k1_kvepi:')
    p("s_nop 7\ns_nop 4")

    def phi_pair(dst, a0, a1):
        for ins in phi_unit(96, a0, a1, int(dst[1:]), 'vcc'):
            p(ins)
    stamp(p, 5)
    for n in range(0, 8, 2):
        ua = phi_unit(96, 112 + 2*n, 113 + 2*n, 32 + n, 'vcc') + [
            f"v_cvt_pk_bf16_f32 v{96+1}, v{112+2*n}, v{113+2*n}",
            f"v_cndmask_b32 v{48+n}, v{96+1}, v{32+n}, s[50:51]"]
        ub = phi_unit(104, 114 + 2*n, 115 + 2*n, 33 + n, 's[52:53]') + [
            f"v_cvt_pk_bf16_f32 v{104+1}, v{114+2*n}, v{115+2*n}",
            f"v_cndmask_b32 v{49+n}, v{104+1}, v{33+n}, s[50:51]"]
        for ins in zip2(ua, ub):
            p(ins)
    p(f"""
    v_mov_b32 v96, 0x3f803f80
    v_mov_b32 v97, 0x3f803f80
    v_mov_b32 v98, 0x3f803f80
    v_mov_b32 v99, 0x3f803f80
    v_mfma_f32_32x32x16_bf16 v[64:79], v[48:51], v[48:51], 0
    v_mfma_f32_32x32x16_bf16 v[80:95], v[48:51], v[96:99], 0
    v_mfma_f32_32x32x16_bf16 v[64:79], v[52:55], v[52:55], v[64:79]
    v_mfma_f32_32x32x16_bf16 v[80:95], v[52:55], v[96:99], v[80:95]
    """)
    for s in range(8):
        p(f"v_cndmask_b32 v{100+s}, v{72+s}, v{88+s}, s[50:51]")
    p(f"""
    s_lshl_b32 s29, s16, 11
    v_add_u32 v96, s29, v7
    ds_write_b128 v96, v[100:103] offset:{2*SLOT}
    ds_write_b128 v96, v[104:107] offset:{2*SLOT+1024}
    s_waitcnt lgkmcnt(0)
    s_barrier
    s_lshl_b32 s29, s16, 8
    v_lshlrev_b32 v96, 2, v2
    v_add_u32 v96, s29, v96
    """)
    for w in range(8):
        p(f"ds_read_b32 v{100+w}, v96 offset:{2*SLOT + 2048*w}")
    p(f"""
    s_lshl_b32 s30, s14, 11
    s_add_u32 s30, s30, s29
    s_add_u32 s30, s30, {WS_ACC}
    v_lshlrev_b32 v97, 2, v2
    s_waitcnt lgkmcnt(0)
    v_add_f32 v100, v100, v101
    v_add_f32 v102, v102, v103
    v_add_f32 v104, v104, v105
    v_add_f32 v106, v106, v107
    v_add_f32 v100, v100, v102
    v_add_f32 v104, v104, v106
    v_add_f32 v100, v100, v104
    buffer_atomic_add_f32 v100, v97, s[20:23], s30 offen
    """)
    stamp(p, 6)
    rstamp(p, 8)
    stamp_flush(p, 9, 's[20:23]', 's16', 1)
    p.raw('L_k1_end:')
    p('s_endpgm')
    n = p.hazard_pass()
    return p.text(), KD.format(name='k1_kernel', vgpr=256, sgpr=100, acc=128)


def gen_kr():
    p = Prog()
    p.raw('kr_kernel:')
    p(f"""
    s_cmp_ge_u32 s2, 32
    s_cbranch_scc1 L_kr_end
    s_load_dwordx2 s[4:5], s[0:1], 72
    v_lshrrev_b32 v1, 7, v0
    v_lshlrev_b32 v1, 10, v1
    v_bfe_u32 v2, v0, 1, 6
    v_lshlrev_b32 v2, 4, v2
    v_and_b32 v3, 1, v0
    v_lshlrev_b32 v3, 3, v3
    v_add3_u32 v1, v1, v2, v3
    s_waitcnt lgkmcnt(0)
    s_mov_b32 s8, s4
    s_mov_b32 s9, s5
    s_mov_b32 s10, {WS_SIZE}
    s_mov_b32 s11, 0x00020000
    s_lshl_b32 s12, s2, 11
    s_add_u32 s12, s12, {WS_KVP}
    """)
    for rt in range(64):
        if rt == 48:
            p("s_waitcnt vmcnt(16)")
        p(f"""
        buffer_load_dwordx2 v[{8+2*rt}:{9+2*rt}], v1, s[8:11], s12 offen
        s_add_u32 s12, s12, 65536
        """)
    p("s_waitcnt vmcnt(0)")
    p("v_mov_b32 v4, v8\nv_mov_b32 v5, v9")
    for rt in range(1, 64):
        p(f"v_pk_add_f32 v[4:5], v[4:5], v[{8+2*rt}:{9+2*rt}]")
    p(f"""
    v_cvt_pk_bf16_f32 v6, v4, v5
    v_lshrrev_b32 v1, 7, v0
    v_lshlrev_b32 v1, 3, v1
    v_bfe_u32 v2, v0, 1, 6
    v_lshlrev_b32 v2, 4, v2
    v_and_b32 v3, 1, v0
    v_lshlrev_b32 v3, 2, v3
    v_add3_u32 v1, v1, v2, v3
    s_lshl_b32 s12, s2, 10
    s_add_u32 s12, s12, {WS_KVZ}
    buffer_store_dword v6, v1, s[8:11], s12 offen
    """)
    p.raw('L_kr_end:')
    p('s_endpgm')
    p.hazard_pass()
    return p.text(), KD.format(name='kr_kernel', vgpr=144, sgpr=24, acc=144)


K2_D = 8
K2_NS = K2_D + 2
K2_RING = K2_D + 1
K2_LDS = 12 * 2 * 4096
assert 4 * K2_NS * 2048 <= K2_LDS


def gen_k2():
    p = Prog()
    p.raw('k2_kernel:')
    p(f"""
    s_cmp_ge_u32 s2, 256
    s_cbranch_scc1 L_k2_end
    s_load_dwordx2 s[4:5], s[0:1], 0
    s_load_dwordx2 s[6:7], s[0:1], 16
    s_load_dwordx2 s[8:9], s[0:1], 48
    s_load_dwordx2 s[10:11], s[0:1], 56
    s_load_dwordx2 s[12:13], s[0:1], 72
    v_lshrrev_b32 v1, 6, v0
    v_and_b32 v2, 63, v0
    s_and_b32 s14, s2, 7
    s_lshr_b32 s15, s2, 3
    s_lshl_b32 s16, s14, 2
    s_and_b32 s17, s15, 3
    s_add_u32 s16, s16, s17
    s_lshr_b32 s17, s15, 2
    v_readfirstlane_b32 s18, v1
    s_mov_b32 s44, 1.0
    s_mov_b32 s45, 1.0
    s_mov_b32 s46, {f32bits(-LOG2E)}
    s_mov_b32 s47, {f32bits(-LOG2E)}
    s_waitcnt lgkmcnt(0)
    """)
    p(f"""
    s_mov_b32 s20, s12
    s_mov_b32 s21, s13
    s_mov_b32 s22, {WS_SIZE}
    s_mov_b32 s23, 0x00020000
    s_mov_b32 s24, s8
    s_mov_b32 s25, s9
    s_mov_b32 s26, 1835008
    s_mov_b32 s27, 0x00020000
    s_mov_b32 s28, s6
    s_mov_b32 s29, s7
    s_mov_b32 s30, 524288
    s_mov_b32 s31, 0x00020000
    s_mov_b32 s32, s4
    s_mov_b32 s33, s5
    s_mov_b32 s34, 2097152
    s_mov_b32 s35, 0x00020000
    s_mov_b32 s36, s10
    s_mov_b32 s37, s11
    s_mov_b32 s38, 2097152
    s_mov_b32 s39, 0x00020000
    """)
    p(f"""
    v_lshrrev_b32 v3, 3, v2
    v_lshlrev_b32 v3, 10, v3
    v_bfe_u32 v4, v2, 1, 2
    v_bfe_u32 v5, v2, 4, 1
    v_lshlrev_b32 v5, 1, v5
    v_xor_b32 v4, v4, v5
    v_lshlrev_b32 v4, 5, v4
    v_and_b32 v5, 1, v2
    v_lshlrev_b32 v5, 4, v5
    v_add3_u32 v3, v3, v4, v5
    s_lshl_b32 s19, s17, 7
    v_add_u32 v3, s19, v3
    """)
    p(f"""
    v_lshrrev_b32 v8, 5, v2
    v_lshlrev_b32 v8, 2, v8
    v_bfe_u32 v9, v2, 2, 2
    v_add_u32 v8, v8, v9
    v_lshlrev_b32 v8, 7, v8
    v_and_b32 v9, 3, v2
    v_lshlrev_b32 v9, 3, v9
    v_add_u32 v8, v8, v9
    s_mul_i32 s19, s18, {K2_NS*2048}
    v_add_u32 v8, s19, v8
    v_bfe_u32 v9, v2, 4, 1
    v_bfe_u32 v10, v2, 3, 1
    v_lshlrev_b32 v10, 1, v10
    """)
    for ct in range(2):
        p(f"""
        v_add_u32 v11, {2*ct}, v9
        v_xor_b32 v11, v11, v10
        v_lshlrev_b32 v11, 5, v11
        v_add_u32 v{4+ct}, v8, v11
        """)
    p(f"""
    v_lshlrev_b32 v6, 4, v2
    s_lshr_b32 s40, s18, 1
    s_lshl_b32 s41, s16, 1
    s_add_u32 s40, s40, s41
    s_lshl_b32 s40, s40, 5
    v_and_b32 v7, 31, v2
    v_add_u32 v7, s40, v7
    v_lshlrev_b32 v7, 10, v7
    v_lshrrev_b32 v8, 5, v2
    v_lshlrev_b32 v8, 3, v8
    v_add_u32 v7, v7, v8
    s_lshl_b32 s40, s17, 7
    s_and_b32 s41, s18, 1
    s_lshl_b32 s41, s41, 6
    s_add_u32 s40, s40, s41
    v_add_u32 v7, s40, v7
    """)
    vm = []

    def vmem(text, tag):
        p(text)
        vm.append(tag)

    def wait_tag(tag):
        idx = max(i for i, t in enumerate(vm) if t == tag)
        p(f"s_waitcnt vmcnt({len(vm) - 1 - idx})")

    p(f"""
    s_lshl_b32 s48, s16, 1
    s_mul_i32 s48, s48, 112
    s_mul_i32 s49, s18, 28
    s_add_u32 s48, s48, s49
    s_lshl_b32 s48, s48, 10
    s_add_u32 s48, s48, {WS_H}
    s_mul_i32 s50, s18, {28*16384}
    s_mul_i32 s51, s18, {K2_NS*2048}
    s_lshl_b32 s52, s16, 1
    s_lshl_b32 s52, s52, 5
    s_lshl_b32 s53, s18, 3
    s_add_u32 s52, s52, s53
    s_lshl_b32 s52, s52, 10
    s_add_u32 s52, s52, {WS_PQ}
    s_lshl_b32 s54, s18, 14
    s_add_u32 s54, s54, {WS_ACC}
    s_lshl_b32 s55, s18, 17
    """)
    steps = [('h', i) for i in range(28)] + [('o', i) for i in range(8)]
    NST = len(steps)
    FR = [8 * i for i in range(K2_RING)]
    BF = [16, 24]
    ACCF = [64 + 16 * i for i in range(4)]
    ACCS = [128 + 16 * i for i in range(4)]
    KVZ = 192
    OFR = 224

    def issue(n):
        kind, i = steps[n]
        fr = FR[n % K2_RING]
        st = n % K2_NS
        if kind == 'h':
            a_base, a_step, srd, wbase = 's48', 112 * 1024, 's[24:27]', 's50'
        else:
            a_base, a_step, srd, wbase = 's52', 32 * 1024, 's[28:31]', 's55'
        p(f"s_add_u32 s41, {a_base}, {1024*i}")
        vmem(f"buffer_load_dwordx4 a[{fr}:{fr+3}], v6, s[20:23], s41 offen", n)
        p(f"s_add_u32 s41, s41, {a_step}")
        vmem(f"buffer_load_dwordx4 a[{fr+4}:{fr+7}], v6, s[20:23], s41 offen", n)
        p(f"""
        s_add_u32 m0, s51, {st*2048}
        s_add_u32 s41, {wbase}, {16384*i}
        """)
        vmem(f"buffer_load_dwordx4 v3, {srd}, s41 offen lds", n)
        p(f"""
        s_add_u32 m0, s51, {st*2048+1024}
        s_add_u32 s41, s41, 8192
        """)
        vmem(f"buffer_load_dwordx4 v3, {srd}, s41 offen lds", n)

    def breads(n):
        st = n % K2_NS
        bf = BF[n & 1]
        for ct in range(2):
            for ri in range(2):
                p(f"ds_read_b64_tr_b16 v[{bf+4*ct+2*ri}:{bf+4*ct+2*ri+1}], v{4+ct} offset:{st*2048 + ri*1024}")

    first_mfma = {}

    def mf(acc, a, b, key):
        srcc = '0' if key not in first_mfma else f'v[{acc}:{acc+15}]'
        first_mfma[key] = True
        p(f"v_mfma_f32_32x32x16_bf16 v[{acc}:{acc+15}], {a}, {b}, {srcc}")

    stamp(p, 0)
    rstamp(p, 5)
    for n in range(min(K2_D, NST)):
        issue(n)
    for hd in range(8):
        for q in range(2):
            vmem(f"buffer_load_dwordx4 v[{128+8*hd+4*q}:{131+8*hd+4*q}], v6, s[20:23], s54 offen offset:{1024*q}", 'kvz')
        p("s_add_u32 s54, s54, 2048")
    for q in range(4):
        vmem(f"buffer_load_dwordx2 v[{8+2*q}:{9+2*q}], v7, s[32:35], 0 offen offset:{16*q}", 'x')
    wait_tag(0)
    stamp(p, 1)
    breads(0)
    for n in range(NST):
        kind, i = steps[n]
        if n == 12:
            for hd in range(8):
                for j in range(4):
                    p(f"v_cvt_pk_bf16_f32 v{KVZ+4*hd+j}, v{128+8*hd+2*j}, v{129+8*hd+2*j}")
        if n + K2_D < NST:
            issue(n + K2_D)
        if n + 1 < NST:
            wait_tag(n + 1)
            breads(n + 1)
            p("s_waitcnt lgkmcnt(4)")
        else:
            p("s_waitcnt lgkmcnt(0)")
        fr = FR[n % K2_RING]
        bf = BF[n & 1]
        if kind == 'h':
            for rt in range(2):
                for ct in range(2):
                    mf(ACCF[2*rt+ct], f"v[{bf+4*ct}:{bf+4*ct+3}]", f"a[{fr+4*rt}:{fr+4*rt+3}]", ('f', 2*rt+ct))
        else:
            for rt in range(2):
                D = 32 + 16 * rt
                p(f"v_mfma_f32_32x32x16_bf16 v[{D}:{D+15}], v[{KVZ+4*i}:{KVZ+4*i+3}], a[{fr+4*rt}:{fr+4*rt+3}], 0")
            for rt in range(2):
                D = 32 + 16 * rt
                p(f"""
                v_cvt_pk_bf16_f32 v{D+9}, v{D+8}, v{D+8}
                v_lshlrev_b32 v{D+9}, 16, v{D+9}
                v_add_f32 v{D+9}, {f32bits(1e-6)}, v{D+9}
                v_cvt_pk_bf16_f32 v{D+9}, v{D+9}, v{D+9}
                v_lshlrev_b32 v{D+9}, 16, v{D+9}
                v_rcp_f32 v{D+10}, v{D+9}
                v_fma_f32 v{D+11}, -v{D+9}, v{D+10}, 1.0
                v_fma_f32 v{D+10}, v{D+11}, v{D+10}, v{D+10}
                """)
                for j in range(4):
                    p(f"""
                    v_cvt_pk_bf16_f32 v{D+12}, v{D+2*j}, v{D+2*j+1}
                    v_lshlrev_b32 v{D+13}, 16, v{D+12}
                    v_and_b32 v{D+14}, 0xffff0000, v{D+12}
                    v_mul_f32 v{D+13}, v{D+13}, v{D+10}
                    v_mul_f32 v{D+14}, v{D+14}, v{D+10}
                    v_cvt_pk_bf16_f32 v{OFR+4*rt+j}, v{D+13}, v{D+14}
                    """)
            for rt in range(2):
                for ct in range(2):
                    mf(ACCS[2*rt+ct], f"v[{bf+4*ct}:{bf+4*ct+3}]", f"v[{OFR+4*rt}:{OFR+4*rt+3}]", ('s', 2*rt+ct))

    stamp(p, 2)
    p("s_nop 7\ns_nop 4\ns_barrier")
    p(f"v_mov_b32 v20, v6")
    for w in range(4):
        lab = f'L_k2_w{w}'
        p(f"s_cmp_lg_u32 s18, {w}\ns_cbranch_scc1 {lab}_skip")
        for qd in range(4):
            if qd == w:
                continue
            slot = w if w < qd else w - 1
            p(f"v_add_u32 v21, {qd * 24576}, v20")
            for kind, accs in enumerate((ACCF, ACCS)):
                blk = (slot * 2 + kind) * 4096
                for q in range(4):
                    p(f"ds_write_b128 v21, v[{accs[qd]+4*q}:{accs[qd]+4*q+3}] offset:{blk + q*1024}")
        p.raw(f'{lab}_skip:')
    p("""
    s_waitcnt lgkmcnt(0)
    s_barrier
    """)
    for w in range(4):
        lab = f'L_k2_r{w}'
        p(f"s_cmp_lg_u32 s18, {w}\ns_cbranch_scc1 {lab}_skip")
        for kind, accs in enumerate((ACCF, ACCS)):
            for r in range(16):
                p(f"v_mov_b32 v{32 + 16*kind + r}, v{accs[w] + r}")
        p(f"v_add_u32 v21, {w * 24576}, v20")
        for kind in range(2):
            for slot in range(3):
                blk = (slot * 2 + kind) * 4096
                for q in range(4):
                    d = 160 + (kind * 3 + slot) * 16 + 4 * q
                    p(f"ds_read_b128 v[{d}:{d+3}], v21 offset:{blk + q*1024}")
        p.raw(f'{lab}_skip:')
    p("s_waitcnt lgkmcnt(0)")
    for kind in range(2):
        for slot in range(3):
            for r2 in range(8):
                a = 32 + 16 * kind + 2 * r2
                b = 160 + (kind * 3 + slot) * 16 + 2 * r2
                p(f"v_pk_add_f32 v[{a}:{a+1}], v[{a}:{a+1}], v[{b}:{b+1}]")
    stamp(p, 3)
    p("s_waitcnt vmcnt(0)")
    for q in range(4):
        for h2 in range(2):
            f0, f1 = 32 + 4 * q + 2 * h2, 33 + 4 * q + 2 * h2
            s0, s1 = 48 + 4 * q + 2 * h2, 49 + 4 * q + 2 * h2
            xv = 8 + 2 * q + h2
            p(f"""
            v_cvt_pk_bf16_f32 v20, v{f0}, v{f1}
            v_lshlrev_b32 v22, 16, v20
            v_and_b32 v23, 0xffff0000, v20
            v_pk_mul_f32 v[24:25], v[22:23], s[46:47]
            v_exp_f32 v24, v24
            v_exp_f32 v25, v25
            v_pk_add_f32 v[24:25], v[24:25], s[44:45]
            v_rcp_f32 v24, v24
            v_rcp_f32 v25, v25
            v_pk_mul_f32 v[24:25], v[24:25], v[22:23]
            v_cvt_pk_bf16_f32 v20, v24, v25
            v_lshlrev_b32 v24, 16, v20
            v_and_b32 v25, 0xffff0000, v20
            v_cvt_pk_bf16_f32 v20, v{s0}, v{s1}
            v_lshlrev_b32 v22, 16, v20
            v_and_b32 v23, 0xffff0000, v20
            v_pk_mul_f32 v[24:25], v[24:25], v[22:23]
            v_cvt_pk_bf16_f32 v20, v24, v25
            v_lshlrev_b32 v24, 16, v20
            v_and_b32 v25, 0xffff0000, v20
            v_lshlrev_b32 v22, 16, v{xv}
            v_and_b32 v23, 0xffff0000, v{xv}
            v_pk_add_f32 v[24:25], v[24:25], v[22:23]
            v_cvt_pk_bf16_f32 v{26+h2}, v24, v25
            """)
        p(f"buffer_store_dwordx2 v[26:27], v7, s[36:39], 0 offen offset:{16*q}")
    stamp(p, 4)
    rstamp(p, 6)
    stamp_flush(p, 7, 's[20:23]', 's18', 3)
    p.raw('L_k2_end:')
    p('s_endpgm')
    p.hazard_pass()
    return p.text(), KD.format(name='k2_kernel', vgpr=256 + 8 * K2_RING, sgpr=100, acc=256)


def build(kernels, launches):
    hdr = open('cdna_kernels/' + NAME + '.s.ref').read().split('; Override launch geometry')[0]
    out = hdr
    for l in launches:
        out += l + '\n'
    out += '.amdgcn_target "amdgcn-amd-amdhsa--gfx950"\n.text\n'
    for name, (code, kd) in kernels.items():
        out += f'.globl {name}\n.p2align 8\n.type {name},@function\n' + code
    out += '.section .rodata,"a"\n'
    for name, (code, kd) in kernels.items():
        out += '.p2align 6\n' + kd
    return out


if __name__ == '__main__':
    kernels = {}
    launches = []
    kernels['ln_kernel'] = gen_ln()
    launches.append(f'; @launch kernel=ln_kernel grid=({512+LN_PREF},1,1) block=(256,1,1) lds=0')
    kernels['k1_kernel'] = gen_k1()
    launches.append(f'; @launch kernel=k1_kernel grid=(256,1,1) block=(512,1,1) lds={K1_LDS}')
    kernels['k2_kernel'] = gen_k2()
    launches.append(f'; @launch kernel=k2_kernel grid=(256,1,1) block=(256,1,1) lds={K2_LDS}')
    txt = build(kernels, launches)
    open('cdna_kernels/' + NAME + '.s', 'w').write(txt)
    print('written', len(txt), 'bytes')
```
